```python
import torch

def _softmax(x, axis=-1):
    return torch.softmax(x, dim=axis)
def _gelu(x):
    return torch.nn.functional.gelu(x, approximate="tanh")
def _silu(x):
    return torch.nn.functional.silu(x)
def _sigmoid(x):
    return torch.sigmoid(x)
def _layernorm(x, axis=-1, eps=1e-5):
    m = x.mean(dim=axis, keepdim=True)
    v = x.var(dim=axis, keepdim=True, unbiased=False)
    return (x - m) / torch.sqrt(v + eps)
def _scatter_add(tgt, idx, src, axis=0):
    return tgt.clone().index_add_(axis, idx, src)
def _segment_sum(src, seg, n):
    out = torch.zeros((n,) + src.shape[1:], dtype=src.dtype)
    return out.index_add_(0, seg, src)
def _pad(x, pw):
    flat = tuple(v for pair in reversed(pw) for v in pair)
    return torch.nn.functional.pad(x, flat)

kernel_name = 'gated_mix__linear_kernel_hedgehog__grouped_kv_mqa__prompt'

def setup_inputs():

    _w = (lambda a: (lambda t: t.to(torch.bfloat16) if t.is_floating_point() else t)(torch.as_tensor(a)))
    def _A_setup():
        B, S, D, H = 1, 2048, 640, 32
        Dh = D // H
        return {
            "x": _w((lambda *s: torch.randn(*s, dtype=torch.bfloat16) * 0.05)(B, S, D)),
            "wqkv": _w((lambda *s: torch.randn(*s, dtype=torch.bfloat16) * 1.6)(D, 3 * D)),
            "w_phi": _w((lambda *s: torch.randn(*s, dtype=torch.bfloat16) * 1.6)(H, Dh, Dh) * (Dh ** -0.5)),
            "wo": _w((lambda *s: torch.randn(*s, dtype=torch.bfloat16) * 0.05)(D, D)),
        }
    _A_in = _A_setup()

    def _B_setup():
        B, S, D, H = 1, 2048, 640, 32
        Dh = D // H
        return {
            "x": _w((lambda *s: torch.randn(*s, dtype=torch.bfloat16) * 0.05)(B, S, D)),
            "wq": _w((lambda *s: torch.randn(*s, dtype=torch.bfloat16) * 1.6)(D, H * Dh)),
            "wk": _w((lambda *s: torch.randn(*s, dtype=torch.bfloat16) * 1.6)(D, Dh)),
            "wv": _w((lambda *s: torch.randn(*s, dtype=torch.bfloat16) * 0.05)(D, Dh)),
            "wo": _w((lambda *s: torch.randn(*s, dtype=torch.bfloat16) * 0.05)(H * Dh, D)),
        }
    _B_in = _B_setup()

    return {
        "A_x": _A_in["x"],
        "A_wqkv": _A_in["wqkv"],
        "A_w_phi": _A_in["w_phi"],
        "A_wo": _A_in["wo"],
        "B_x": _B_in["x"],
        "B_wq": _B_in["wq"],
        "B_wk": _B_in["wk"],
        "B_wv": _B_in["wv"],
        "B_wo": _B_in["wo"],
        "gate_w": _w((lambda *s: torch.randn(*s, dtype=torch.bfloat16) * 0.05)(640) * 16.0),
    }

def reference(A_x, A_wqkv, A_w_phi, A_wo, B_x, B_wq, B_wk, B_wv, B_wo, gate_w):
    def _A_ref(x, wqkv, w_phi, wo):
        B, S, D = x.shape
        H = 32; Dh = D // H
        qkv = (lambda x, *d: x.permute(*d))((x @ wqkv).reshape(B, S, 3, H, Dh), 2, 0, 3, 1, 4)
        q, k, v = qkv[0], qkv[1], qkv[2]
        pq = torch.einsum("bhsd,hdf->bhsf", q, w_phi)
        pk = torch.einsum("bhsd,hdf->bhsf", k, w_phi)
        phi_q = torch.concatenate([_softmax(pq, axis=-1), _softmax(-pq, axis=-1)], axis=-1)
        phi_k = torch.concatenate([_softmax(pk, axis=-1), _softmax(-pk, axis=-1)], axis=-1)
        kv = torch.einsum("bhsf,bhsd->bhfd", phi_k, v)
        z  = torch.einsum("bhsf->bhf", phi_k)
        num = torch.einsum("bhqf,bhfd->bhqd", phi_q, kv)
        den = torch.einsum("bhqf,bhf->bhq", phi_q, z)[..., None] + 1e-6
        o = num / den
        return (lambda x, *d: x.permute(*d))(o, 0, 2, 1, 3).reshape(B, S, D) @ wo

    def _B_ref(x, wq, wk, wv, wo):
        B, S, D = x.shape
        H = 32
        Dh = D // H
        q = (lambda x, *d: x.permute(*d))((x @ wq).reshape(B, S, H, Dh), 0, 2, 1, 3)
        k = x @ wk
        v = x @ wv
        scores = torch.einsum("bhqd,bkd->bhqk", q, k) * (Dh ** -0.5)
        p = _softmax(scores, axis=-1)
        o = torch.einsum("bhqk,bkd->bhqd", p, v)
        return (lambda x, *d: x.permute(*d))(o, 0, 2, 1, 3).reshape(B, S, H * Dh) @ wo

    x = A_x
    g = _sigmoid((x * gate_w).sum(-1, keepdims=True))
    a = _A_ref(x, A_wqkv, A_w_phi, A_wo)
    b = _B_ref(x, B_wq, B_wk, B_wv, B_wo)
    return g * a + (1 - g) * b
```

```python
import re

REG_RE = re.compile(r'\b([vas])(\d+)\b|\b([vas])\[(\d+):(\d+)\]')
SPECIAL = ('vcc', 'exec', 'm0', 'scc')

TRANS = ('v_exp_f32', 'v_log_f32', 'v_rcp_f32', 'v_rsq_f32', 'v_sqrt_f32', 'v_sin_f32', 'v_cos_f32')


def regs_of(tok):
    out = []
    for m in REG_RE.finditer(tok):
        if m.group(1):
            out.append((m.group(1), int(m.group(2))))
        else:
            for i in range(int(m.group(4)), int(m.group(5)) + 1):
                out.append((m.group(3), i))
    t = tok.strip()
    for s in ('vcc', 'exec', 'm0'):
        if re.search(r'\b' + s + r'(_lo|_hi)?\b', t):
            out.append((s, 0))
    return out


def split_ops(s):
    ops, depth, cur = [], 0, ''
    for ch in s:
        if ch == '[':
            depth += 1
        if ch == ']':
            depth -= 1
        if ch == ',' and depth == 0:
            ops.append(cur.strip())
            cur = ''
        else:
            cur += ch
    if cur.strip():
        ops.append(cur.strip())
    return ops


class Ins:
    __slots__ = ('text', 'mn', 'kind', 'dst', 'src', 'passes', 'srcc', 'tag', 'ws', 'srcab')

    def __init__(self, text, tag=None):
        self.text = text
        self.tag = tag
        self.passes = 0
        self.srcc = []
        self.srcab = []
        t = text.split(';')[0].strip()
        parts = t.split(None, 1)
        self.mn = mn = parts[0] if parts else ''
        rest = parts[1] if len(parts) > 1 else ''
        ops = split_ops(rest)
        ops2 = []
        for o in ops:
            ops2.append(o)
        self.dst, self.src = [], []
        self.ws = 1
        if mn.endswith(':') or mn.startswith('.'):
            self.kind = 'label'
            self.ws = 0
        elif mn == 's_nop':
            self.kind = 'nop'
            self.ws = int(ops[0], 0) + 1
        elif mn == 's_waitcnt':
            self.kind = 'wait'
        elif mn == 's_barrier':
            self.kind = 'barrier'
        elif mn.startswith('s_cbranch') or mn in ('s_branch', 's_endpgm', 's_setpc_b64', 's_swappc_b64'):
            self.kind = 'branch'
            if 'vcc' in mn:
                self.src = [('vcc', 0)]
            if 'exec' in mn:
                self.src = [('exec', 0)]
        elif mn.startswith('s_load') or mn.startswith('s_memtime') or mn.startswith('s_memrealtime') or mn.startswith('s_buffer_load'):
            self.kind = 'smem'
            self.dst = regs_of(ops[0])
            for o in ops[1:]:
                self.src += regs_of(o)
        elif mn.startswith('s_'):
            self.kind = 'salu'
            if mn.startswith('s_cmp') or mn in ('s_sleep', 's_setprio', 's_bitcmp0_b32', 's_bitcmp1_b32'):
                for o in ops:
                    self.src += regs_of(o)
            else:
                self.dst = regs_of(ops[0]) if ops else []
                for o in ops[1:]:
                    self.src += regs_of(o)
                if 'saveexec' in mn:
                    self.dst.append(('exec', 0))
        elif mn.startswith('v_mfma'):
            self.kind = 'mfma'
            self.dst = regs_of(ops[0])
            self.srcab = regs_of(ops[1]) + regs_of(ops[2])
            self.srcc = regs_of(ops[3])
            self.src = self.srcab + self.srcc
            self.passes = 8 if '32x32' in mn else 4
        elif mn.startswith('v_'):
            self.kind = 'trans' if mn.replace('_e32', '').replace('_e64', '') in TRANS else 'valu'
            if mn.startswith('v_cmp'):
                self.dst = regs_of(ops[0])
                for o in ops[1:]:
                    self.src += regs_of(o)
                if mn.startswith('v_cmpx'):
                    self.dst.append(('exec', 0))
            elif mn.startswith('v_permlane') and 'swap' in mn:
                self.dst = regs_of(ops[0]) + regs_of(ops[1])
                self.src = list(self.dst)
            elif mn.startswith('v_add_co') or mn.startswith('v_sub_co') or mn.startswith('v_addc_co') or mn.startswith('v_subb_co'):
                self.dst = regs_of(ops[0]) + regs_of(ops[1])
                for o in ops[2:]:
                    self.src += regs_of(o)
            else:
                self.dst = regs_of(ops[0])
                for o in ops[1:]:
                    self.src += regs_of(o)
                if mn.startswith('v_fmac') or mn.startswith('v_pk_fmac') or 'UNUSED_PRESERVE' in text or mn.startswith('v_writelane'):
                    self.src += self.dst
        elif mn.startswith('ds_'):
            if mn.startswith('ds_read') or 'bpermute' in mn or 'swizzle' in mn or mn.startswith('ds_permute'):
                self.kind = 'ldsr'
                self.dst = regs_of(ops[0])
                for o in ops[1:]:
                    self.src += regs_of(o)
            else:
                self.kind = 'ldsw'
                for o in ops:
                    self.src += regs_of(o)
        elif mn.startswith('buffer_') or mn.startswith('global_'):
            isld = '_load' in mn
            lds = bool(re.search(r'\blds\b', rest)) or '_lds_' in mn
            if mn in ('buffer_wbl2', 'buffer_inv'):
                self.kind = 'vst'
            elif lds:
                self.kind = 'dma'
                for o in ops:
                    self.src += regs_of(o)
                self.src.append(('m0', 0))
            elif isld:
                self.kind = 'vld'
                self.dst = regs_of(ops[0])
                for o in ops[1:]:
                    self.src += regs_of(o)
                if 'd16' in mn:
                    self.src += self.dst
            elif 'atomic' in mn:
                self.kind = 'vst'
                for o in ops:
                    self.src += regs_of(o)
                if re.search(r'\bsc0\b', rest):
                    self.kind = 'vld'
                    self.dst = regs_of(ops[0])
            else:
                self.kind = 'vst'
                for o in ops:
                    self.src += regs_of(o)
        else:
            raise ValueError('unknown instruction: ' + text)


class Asm:
    def __init__(self):
        self.items = []

    def __call__(self, text, tag=None):
        for line in text.strip().split('\n'):
            line = line.strip()
            if not line or line.startswith(';'):
                continue
            self.items.append(Ins(line, tag))
        return self

    def ins(self, text, tag=None):
        return Ins(text, tag)

    def extend(self, lst):
        for x in lst:
            if isinstance(x, str):
                self(x)
            else:
                self.items.append(x)

    def wait_tag(self, tag):
        i = Ins('s_waitcnt')
        i.kind = 'waittag'
        i.tag = tag
        self.items.append(i)

    def wait_lds(self):
        self('s_waitcnt lgkmcnt(0)')

    def push(self):
        i = Ins('s_waitcnt')
        i.kind = 'push'
        self.items.append(i)

    def pop(self):
        i = Ins('s_waitcnt')
        i.kind = 'pop'
        self.items.append(i)

    def finalize(self, check_flow=True):
        out = []
        vmq = []
        lgq = []
        pos = 0
        lastw = {}
        mfma_srcc = {}
        store_data = {}

        def emit(i):
            nonlocal pos
            out.append(i)
            pos += i.ws

        def emit_wait(vm=None, lg=None):
            nonlocal vmq, lgq
            parts = []
            if vm is not None:
                vm = min(vm, 63)
                parts.append(f'vmcnt({vm})')
                vmq = vmq[len(vmq) - vm:] if vm > 0 else []
            if lg is not None:
                lg = min(lg, 15)
                parts.append(f'lgkmcnt({lg})')
                lgq = lgq[len(lgq) - lg:] if lg > 0 else []
            if parts:
                emit(Ins('s_waitcnt ' + ' '.join(parts)))

        stack = []
        for i in self.items:
            if i.kind == 'push':
                stack.append((list(vmq), list(lgq)))
                continue
            if i.kind == 'pop':
                ovm, olg = stack.pop()
                for o in vmq + lgq:
                    if o.dst and o not in ovm and o not in olg:
                        raise AssertionError('region leaves loads in flight: ' + o.text)
                vmq, lgq = ovm, olg
                continue
            if i.kind == 'waittag':
                idx = [n for n, o in enumerate(vmq) if o.tag == i.tag]
                if idx:
                    emit_wait(vm=len(vmq) - 1 - max(idx))
                continue
            if i.kind == 'wait':
                m = re.search(r'vmcnt\((\d+)\)', i.text)
                if m:
                    n = int(m.group(1))
                    vmq = vmq[len(vmq) - n:] if 0 < n < len(vmq) else ([] if n == 0 else vmq)
                m = re.search(r'lgkmcnt\((\d+)\)', i.text)
                if m:
                    n = int(m.group(1))
                    lgq = lgq[len(lgq) - n:] if 0 < n < len(lgq) else ([] if n == 0 else lgq)
                emit(i)
                continue
            if i.kind in ('label', 'branch'):
                if check_flow and i.mn != 's_endpgm' and not i.mn.startswith('.'):
                    pend = [o for o in vmq if o.dst] + [o for o in lgq if o.dst]
                    if pend and not (i.tag in ('keep', 'nopad')):
                        raise AssertionError(f'loads in flight at control flow {i.text}: {pend[0].text}')
                    need = 0
                    for r, (p, w) in lastw.items():
                        if w.kind == 'mfma':
                            need = max(need, (12 if w.passes == 8 else 8) - (pos - p))
                        elif w.kind in ('valu', 'trans'):
                            need = max(need, 5 - (pos - p))
                    if need > 0 and i.tag != 'nopad':
                        while need > 0:
                            n = min(need, 16)
                            emit(Ins(f's_nop {n - 1}'))
                            need -= n
                emit(i)
                continue
            touched = set(i.src) | set(i.dst)
            vm = None
            idx = [n for n, o in enumerate(vmq) if touched & set(o.dst)]
            if idx:
                vm = len(vmq) - 1 - max(idx)
            lg = None
            idx = [n for n, o in enumerate(lgq) if touched & set(o.dst)]
            if idx:
                if any(o.kind == 'smem' for o in lgq):
                    lg = 0
                else:
                    lg = len(lgq) - 1 - max(idx)
            if vm is not None or lg is not None:
                emit_wait(vm, lg)
            need = 0

            def req(p, n):
                nonlocal need
                need = max(need, n - (pos - p))
            isvalu = i.kind in ('valu', 'trans')
            ismem = i.kind in ('vld', 'vst', 'dma', 'ldsr', 'ldsw')
            for r in set(i.src):
                if r not in lastw:
                    continue
                p, w = lastw[r]
                if w.kind == 'mfma':
                    big = 12 if w.passes == 8 else 8
                    if i.kind == 'mfma':
                        if r in i.srcab:
                            req(p, big)
                        elif r in i.srcc:
                            if i.srcc == w.dst and i.passes == w.passes and i.mn == w.mn:
                                pass
                            else:
                                req(p, 10 if w.passes == 8 else 6)
                    else:
                        req(p, big)
                elif w.kind in ('valu', 'trans'):
                    if r[0] in ('v', 'a'):
                        if i.kind == 'mfma':
                            req(p, 2)
                        if isvalu and w.kind == 'trans' and i.kind != 'trans':
                            req(p, 1)
                        if w.kind == 'trans' and not isvalu:
                            req(p, 1)
                        if i.mn.startswith('v_readfirstlane') or i.mn.startswith('v_readlane'):
                            req(p, 1)
                        if i.mn.startswith('v_permlane') or 'dpp' in i.text or 'row_' in i.text or 'quad_perm' in i.text:
                            req(p, 2)
                        if 'sdwa' in w.mn or 'op_sel' in w.text and 'pk' not in w.mn:
                            req(p, 1)
                    else:
                        if ismem:
                            req(p, 5)
                        if isvalu or i.kind == 'mfma':
                            req(p, 4 if (r[0] == 'exec' or i.mn.startswith('v_readlane') or i.mn.startswith('v_writelane')) else 2)
                        if i.kind == 'salu':
                            req(p, 1)
                elif w.kind == 'salu':
                    if r[0] == 'm0' and i.kind == 'dma':
                        req(p, 1)
            for r in set(i.dst):
                if r in lastw:
                    p, w = lastw[r]
                    if w.kind == 'mfma' and not (i.kind == 'mfma'):
                        req(p, 12 if w.passes == 8 else 8)
                    if w.kind == 'mfma' and i.kind == 'mfma' and r not in i.srcc:
                        req(p, 10 if w.passes == 8 else 6) if w.passes > i.passes else None
                if r in mfma_srcc and (isvalu or i.kind in ('ldsr', 'vld')):
                    p, ps = mfma_srcc[r]
                    req(p, 7 if ps == 8 else 3)
                if r in store_data:
                    req(store_data[r], 2)
            while need > 0:
                n = min(need, 16)
                emit(Ins(f's_nop {n - 1}'))
                need -= n
            emit(i)
            for r in i.dst:
                lastw[r] = (pos, i)
            if i.kind == 'mfma':
                for r in i.srcc:
                    mfma_srcc[r] = (pos, i.passes)
            if i.kind == 'vst' and ('x4' in i.mn or 'x3' in i.mn):
                for r in i.src:
                    if r[0] in ('v', 'a'):
                        store_data[r] = pos
            if i.kind in ('vld', 'vst', 'dma'):
                vmq.append(i)
            if i.kind in ('ldsr', 'ldsw', 'smem'):
                lgq.append(i)
                if i.kind == 'smem' and not i.mn.endswith('dword'):
                    lgq.append(i)
        return out

    def text(self, **kw):
        lines = []
        for i in self.finalize(**kw):
            if i.kind == 'label':
                lines.append(i.text)
            else:
                lines.append('    ' + i.text)
        return '\n'.join(lines) + '\n'


def interleave(a, b):
    out = []
    na, nb = len(a), len(b)
    ia = ib = 0
    while ia < na or ib < nb:
        if ib >= nb or (ia < na and ia * nb <= ib * na):
            out.append(a[ia])
            ia += 1
        else:
            out.append(b[ib])
            ib += 1
    return out
```

```python
import struct, sys, os
from asmb import *

LOG2E = 1.4426950408889634


def f2u(x):
    return struct.unpack('<I', struct.pack('<f', x))[0]


def hx(x):
    return f'0x{x:08x}'


NAME = 'gated_mix__linear_kernel_hedgehog__grouped_kv_mqa__prompt'

WS_KF1 = 0x0
WS_KF2 = 0x10000
WS_VF = 0x20000
WS_G = 0x38000
WS_KVP = 0x40000
WS_OA = 0x200000
WS_OB = 0x480000
WS_DBG = 0x800000
WS_SIZE = 0x10000000

SLOT = 20736
ARR1 = 10368
L_EX = 124416
L_WPHI = 150016
L_ZERO = L_WPHI + 1600
L_GA = 154112
L_PQ = L_EX
L_PK = 4 * SLOT
L_QB = 106496
L_VA = 0
L_KVT = 118784
OPART = 3328
LDS12 = 163840

DEBUG = os.environ.get('KDEBUG', '')


def srd(k, d, lo, hi, nbytes):
    k(f's_mov_b32 s{d}, s{lo}')
    k(f's_and_b32 s{d+1}, s{hi}, 0xffff')
    k(f's_mov_b32 s{d+2}, {hx(nbytes)}')
    k(f's_mov_b32 s{d+3}, 0x00020000')


def vr(b, n):
    return f'v[{b}:{b+n-1}]'


def ar(b, n):
    return f'a[{b}:{b+n-1}]'


def code_prefetch(k, start_label, end_label, nbytes_max, vtmp, vdst, s0):
    k(f's_getpc_b64 s[{s0}:{s0+1}]')
    k(f'L_pc_{start_label}:', tag='nopad')
    k(f'v_lshlrev_b32 v{vtmp}, 6, v0')
    for off in range(0, nbytes_max, 16384):
        if off:
            k(f'v_add_u32 v{vtmp}, 0x4000, v{vtmp}')
        k(f'v_min_u32 v{vtmp+1}, ({end_label}-L_pc_{start_label}-4), v{vtmp}')
        k(f'global_load_dword v{vdst}, v{vtmp+1}, s[{s0}:{s0+1}]')


def gen_k12():
    k = Asm()
    SX, SW, SQB, SWS, SDBG, SEX, SPHI, SDMA = 4, 8, 12, 16, 20, 24, 28, 32
    RB, HP, WV = 36, 37, 38
    LANE, T0 = 1, 2
    TRB0, TRB1 = 10, 11
    DK, DP, DV = 12, 17, 22
    XOFF = 27
    EXA0, EXA1, EXS = 28, 29, 30
    PHA, PHW, QBW, SC2, CST, ZERO = 31, 32, 33, 34, 35, 36
    VG, VJ = 37, 38
    ACC1, ACC2, ACCX = 40, 80, 120
    AF = 124
    PK = 164
    WF = 184
    GT = 236

    k('k12_kernel:')
    k('s_cmp_ge_u32 s2, 256')
    k('s_cbranch_scc1 L12_end')
    k('s_load_dwordx4 s[40:43], s[0:1], 0')
    k('s_load_dwordx2 s[44:45], s[0:1], 16')
    k('s_load_dwordx4 s[48:51], s[0:1], 40')
    k('s_load_dwordx2 s[52:53], s[0:1], 56')
    k('s_load_dwordx2 s[54:55], s[0:1], 72')
    k('s_load_dwordx4 s[56:59], s[0:1], 88')
    code_prefetch(k, 'k12', 'L12_codeend', 49152, 2, 4, 60)
    k(f'v_and_b32 v{LANE}, 63, v0')
    k(f'v_lshrrev_b32 v5, 6, v0')
    k(f'v_readfirstlane_b32 s{WV}, v5')
    k('s_and_b32 s62, s2, 7')
    k('s_lshr_b32 s63, s2, 3')
    k('s_and_b32 s64, s62, 1')
    k('s_lshl_b32 s64, s64, 3')
    k('s_and_b32 s65, s63, 7')
    k(f's_add_u32 s{RB}, s64, s65')
    k('s_lshr_b32 s64, s62, 1')
    k('s_lshl_b32 s64, s64, 2')
    k('s_lshr_b32 s65, s63, 3')
    k(f's_add_u32 s{HP}, s64, s65')
    k(f'v_lshrrev_b32 v{VG}, 4, v{LANE}')
    k(f'v_and_b32 v{VJ}, 15, v{LANE}')
    k(f'v_mov_b32 v{ZERO}, 0')
    k(f's_lshl_b32 s64, s{RB}, 7')
    k(f's_lshl_b32 s65, s{WV}, 5')
    k('s_add_u32 s66, s64, s65')
    k(f'v_add_u32 v5, s66, v{VJ}')
    k('s_movk_i32 s64, 1280')
    k(f'v_mul_lo_u32 v5, v5, s64')
    k(f'v_lshl_add_u32 v{XOFF}, v{VG}, 4, v5')
    for i in range(5):
        k(f'v_add_u32 v5, {64*i}, v{LANE}')
        k(f'v_mul_u32_u24 v6, 205, v5')
        k(f'v_lshrrev_b32 v6, 10, v6')
        k(f'v_mul_u32_u24 v7, 5, v6')
        k(f'v_sub_u32 v7, v5, v7')
        k(f'v_lshlrev_b32 v{DP+i}, 4, v7')
        k(f'v_and_b32 v7, 0x33, v6')
        k(f'v_and_b32 v8, 4, v6')
        k(f'v_lshl_add_u32 v7, v8, 1, v7')
        k(f'v_and_b32 v8, 8, v6')
        k(f'v_lshrrev_b32 v8, 1, v8')
        k(f'v_add_u32 v{DK+i}, v7, v8')
    k(f'v_and_b32 v5, 3, v{LANE}')
    k(f'v_lshrrev_b32 v6, 2, v{VJ}')
    k(f'v_lshrrev_b32 v7, 1, v{VG}')
    k(f'v_lshl_add_u32 v6, v7, 4, v6')
    k(f'v_and_b32 v7, 1, v{VG}')
    k(f'v_lshl_add_u32 v6, v7, 2, v6')
    k(f'v_mul_u32_u24 v6, 80, v6')
    k(f'v_lshrrev_b32 v7, 1, v5')
    k(f'v_mul_u32_u24 v7, {ARR1}, v7')
    k(f'v_add_u32 v6, v6, v7')
    k(f'v_and_b32 v7, 1, v5')
    k(f'v_mul_u32_u24 v7, 40, v7')
    k(f'v_add_u32 v{TRB0}, v6, v7')
    k(f'v_add_u32 v{TRB1}, {3*SLOT}, v{TRB0}')

    k('s_waitcnt lgkmcnt(0)')
    srd(k, SX, 40, 41, 2048 * 1280)
    srd(k, SW, 42, 43, 640 * 3840)
    srd(k, SQB, 48, 49, 640 * 1280)
    srd(k, SWS, 58, 59, WS_SIZE)
    srd(k, SDBG, 56, 57, 256)
    k(f's_mul_i32 s64, s{HP}, 1600')
    k('s_add_u32 s44, s44, s64')
    k('s_addc_u32 s45, s45, 0')
    srd(k, SPHI, 44, 45, 1600)
    srd(k, SEX, 54, 55, 1280)
    k('v_lshlrev_b32 v5, 1, v0')
    for i in range(3):
        k(f'buffer_load_ushort v{GT+i}, v5, s[{SEX}:{SEX+3}], 0 offen offset:{512*i}')
    k(f's_lshl_b32 s64, s{WV}, 10')
    k(f's_add_u32 m0, s64, {L_WPHI}')
    k(f'v_lshlrev_b32 v5, 4, v{LANE}')
    k(f'buffer_load_dwordx4 v5, s[{SPHI}:{SPHI+3}], s64 offen lds', tag='misc')

    k(f's_lshr_b32 s67, s{WV}, 1')
    k(f's_and_b32 s68, s{WV}, 1')
    k(f's_mul_i32 s69, s{HP}, 80')
    k(f's_mul_i32 s70, s67, {ARR1}')
    k('s_mul_i32 s64, s68, 5120')
    k('s_add_u32 s70, s70, s64')

    def dma_setup(p):
        if p == 0:
            for i in range(4):
                k(f's_mov_b32 s{SDMA+i}, s{SW+i}')
            k('s_movk_i32 s71, 3840')
            k('s_mul_i32 s72, s67, 1280')
        else:
            k('s_cmp_eq_u32 s67, 0')
            for i in range(3):
                k(f's_cselect_b32 s{SDMA+i}, s{SQB+i}, s{SW+i}')
            k(f's_mov_b32 s{SDMA+3}, 0x00020000')
            k('s_movk_i32 s71, 3840')
            k('s_cselect_b32 s71, 1280, s71')
            k('s_cselect_b32 s72, 0, 2560')
        k('s_add_u32 s72, s72, s69')
        k('s_lshl_b32 s64, s68, 6')
        k('s_mul_i32 s64, s64, s71')
        k('s_add_u32 s72, s72, s64')
        k('s_lshl_b32 s73, s71, 7')
        for i in range(5):
            k(f'v_mad_u32_u24 v{DV+i}, v{DK+i}, s71, v{DP+i}')

    def dma_block(p, b, slot):
        for i in range(5):
            k(f's_add_u32 m0, s70, {slot*SLOT + i*1024}')
            k(f'buffer_load_dwordx4 v{DV+i}, s[{SDMA}:{SDMA+3}], s72 offen lds', tag=('w', p, b))
        k('s_add_u32 s72, s72, s73')

    k('s_movk_i32 s74, 20480')
    dma_setup(0)
    for b in range(5):
        for s in range(4 * b, 4 * b + 4):
            k(f'buffer_load_dwordx4 {ar(4*s,4)}, v{XOFF}, s[{SX}:{SX+3}], 0 offen offset:{64*s}')
            k(f'buffer_load_dwordx4 {ar(80+4*s,4)}, v{XOFF}, s[{SX}:{SX+3}], s74 offen offset:{64*s}')
        dma_block(0, b, b)
    k.push()
    k(f's_cmp_ge_u32 s{HP}, 8')
    k('s_cbranch_scc1 L12_noexdma', tag='keep')
    k(f's_bitcmp1_b32 s{HP}, 1')
    k('s_cselect_b32 s64, s52, s50')
    k('s_cselect_b32 s65, s53, s51')
    srd(k, SEX, 64, 65, 25600)
    k(f's_mul_i32 s64, s{WV}, 6400')
    k(f'v_lshlrev_b32 v5, 4, v{LANE}')
    for i in range(7):
        if i == 6:
            k('s_mov_b64 exec, 0xffff')
        k(f's_add_u32 m0, s64, {L_EX + i*1024}')
        k(f's_add_u32 s65, s64, {i*1024}')
        k(f'buffer_load_dwordx4 v5, s[{SEX}:{SEX+3}], s65 offen lds', tag='exw')
    k('s_mov_b64 exec, -1')
    k('L12_noexdma:', tag='keep')
    k.pop()
    dma_setup(1)
    dma_block(1, 0, 5)
    k(f'v_lshlrev_b32 v5, 3, v0')
    for i in range(3):
        if i == 2:
            k('v_cmp_gt_u32 vcc, 128, v0')
            k('s_and_saveexec_b64 s[64:65], vcc')
        k(f'ds_write_b16 v5, v{GT+i} offset:{L_GA + 2048*i - 131072}' if False else f'v_add_u32 v6, {L_GA + 2048*i}, v5')
        k(f'ds_write_b16 v6, v{GT+i}')
    k('s_mov_b64 exec, -1')

    k(f'v_and_b32 v5, 3, v{LANE}')
    k(f'v_lshrrev_b32 v6, 2, v{VJ}')
    k(f'v_mul_u32_u24 v6, 40, v6')
    k(f'v_and_b32 v7, 1, v{VG}')
    k(f'v_mul_u32_u24 v7, 800, v7')
    k(f'v_add3_u32 v6, v6, v7, v{ZERO}')
    k(f'v_add_u32 v6, {L_WPHI}, v6')
    k(f'v_mov_b32 v7, {L_ZERO}')
    k(f'v_cmp_eq_u32 vcc, v5, v{VG}')
    k(f'v_cndmask_b32 v{PHA}, v7, v6, vcc')
    k(f's_lshl_b32 s64, s{WV}, 5')
    k(f'v_add_u32 v5, s64, v{VJ}')
    k(f'v_mul_u32_u24 v6, 80, v5')
    k(f'v_and_b32 v7, 1, v{VG}')
    k(f'v_mul_u32_u24 v8, 10240, v7')
    k(f'v_add_u32 v6, v6, v8')
    k(f'v_mov_b32 v8, {L_PQ}')
    k(f'v_mov_b32 v9, {L_PK}')
    k(f'v_cmp_gt_u32 vcc, 2, v{VG}')
    k(f'v_cndmask_b32 v8, v9, v8, vcc')
    k(f'v_add_u32 v{PHW}, v6, v8')
    k(f'v_mul_u32_u24 v6, 48, v5')
    k(f'v_mul_u32_u24 v8, 6144, v7')
    k(f'v_add_u32 v6, v6, v8')
    k(f'v_mov_b32 v8, {L_QB}')
    k(f'v_mov_b32 v9, {L_VA}')
    k(f'v_cndmask_b32 v8, v9, v8, vcc')
    k(f'v_add_u32 v{QBW}, v6, v8')
    k(f'v_mov_b32 v8, {hx(f2u(LOG2E / 20 ** 0.5))}')
    k(f'v_cndmask_b32 v{SC2}, 1.0, v8, vcc')
    k(f'v_mov_b32 v8, 0x3f80')
    k(f'v_cndmask_b32 v{CST}, v8, v{ZERO}, vcc')

    def tr_reads(slot, ks, buf):
        out = []
        base = TRB0 if slot < 3 else TRB1
        so = (slot % 3) * SLOT
        for t in range(5):
            for cr in range(2):
                out.append(f'ds_read_b64_tr_b16 {vr(AF + 20*buf + 4*t + 2*cr, 2)}, v{base} offset:{so + ks*2560 + cr*640 + 8*t}')
        return out

    def gemm_pass(p, acc, slots, refill):
        k.wait_tag(('w', p, 0))
        k('s_waitcnt lgkmcnt(0)')
        k('s_barrier')
        k.extend(tr_reads(slots[0], 0, 0))
        for s in range(20):
            b, ks = divmod(s, 4)
            nxt = []
            if s + 1 < 20:
                nb, nks = divmod(s + 1, 4)
                if nks == 0:
                    k('s_waitcnt lgkmcnt(0)')
                    k.wait_tag(('w', p, nb))
                    k('s_barrier')
                    if refill:
                        refill(nb)
                nxt = tr_reads(slots[nb], nks, (s + 1) % 2)
            mf = []
            for t in range(5):
                for rt in range(2):
                    d = vr(acc + 20 * rt + 4 * t, 4)
                    c = d if s else '0'
                    mf.append(f'v_mfma_f32_16x16x32_bf16 {d}, {vr(AF + 20*(s%2) + 4*t, 4)}, {ar(80*rt + 4*s, 4)}, {c}')
            k.extend(interleave(mf, nxt))

    gemm_pass(0, ACC1, [0, 1, 2, 3, 4], lambda nb: dma_block(1, nb, nb - 1))

    k.push()
    k(f's_cmp_ge_u32 s{HP}, 8')
    k('s_cbranch_scc1 L12_noex', tag='keep')
    k('s_waitcnt vmcnt(0)')
    k('s_barrier')
    k(f'v_and_b32 v5, 3, v{LANE}')
    k(f'v_lshrrev_b32 v6, 2, v{VJ}')
    k(f'v_lshl_add_u32 v6, v{VG}, 3, v6')
    k(f'v_mul_u32_u24 v7, 40, v6')
    k(f'v_lshl_add_u32 v7, v5, 3, v7')
    k(f's_and_b32 s64, s{HP}, 1')
    k('s_lshl_b32 s64, s64, 5')
    k(f's_add_u32 s64, s64, {L_EX}')
    k(f'v_add_u32 v{EXA0}, s64, v7')
    k(f'v_add_u32 v{EXA1}, 160, v{EXA0}')
    k(f'v_mov_b32 v{EXS}, 1280')
    k(f's_and_b32 s64, s{HP}, 3')
    k('s_cmp_eq_u32 s64, 1')
    k('s_cselect_b32 s64, 1, 7')
    k(f'v_cmp_eq_u32 vcc, s64, v5')
    k(f'v_lshlrev_b32 v7, 3, v6')
    k(f'v_add_u32 v7, {L_GA}, v7')
    k(f'v_cndmask_b32 v{EXA0}, v{EXA0}, v7, vcc')
    k(f'v_add_u32 v7, 32, v7')
    k(f'v_cndmask_b32 v{EXA1}, v{EXA1}, v7, vcc')
    k(f'v_mov_b32 v7, 256')
    k(f'v_cndmask_b32 v{EXS}, v{EXS}, v7, vcc')
    k(f's_cmp_ge_u32 s{HP}, 4')
    k('s_cbranch_scc1 L12_ex_rt1', tag='keep')
    for rt in range(2):
        if rt == 1:
            k('L12_ex_rt1:', tag='keep')
        def rd(s):
            return [f'ds_read_b64_tr_b16 {vr(AF + 4*(s%8), 2)}, v{EXA0}',
                    f'ds_read_b64_tr_b16 {vr(AF + 4*(s%8) + 2, 2)}, v{EXA1}',
                    f'v_add_u32 v{EXA0}, v{EXS}, v{EXA0}',
                    f'v_add_u32 v{EXA1}, v{EXS}, v{EXA1}']
        for s in range(4):
            k.extend(rd(s))
        for s in range(20):
            if s + 4 < 20:
                k.extend(rd(s + 4))
            c = vr(ACCX, 4) if s else '0'
            k(f'v_mfma_f32_16x16x32_bf16 {vr(ACCX,4)}, {vr(AF + 4*(s%8), 4)}, {ar(80*rt + 4*s, 4)}, {c}')
        if rt == 0:
            k('s_branch L12_ex_st', tag='keep')
    k('L12_ex_st:', tag='keep')
    k(f's_lshr_b32 s64, s{HP}, 2')
    k('s_lshl_b32 s64, s64, 4')
    k('s_add_u32 s64, s64, s66')
    k(f'v_add_u32 v5, s64, v{VJ}')
    k(f's_bitcmp1_b32 s{HP}, 1')
    k('s_cbranch_scc1 L12_ex_v', tag='keep')
    k(f'v_cvt_pk_bf16_f32 v8, v{ACCX}, v{ACCX+1}')
    k(f'v_cvt_pk_bf16_f32 v9, v{ACCX+2}, v{ACCX+3}')
    k(f's_bitcmp1_b32 s{HP}, 0')
    k('s_cbranch_scc1 L12_ex_k1', tag='keep')
    k('v_lshrrev_b32 v6, 5, v5')
    k('v_lshlrev_b32 v6, 10, v6')
    k('v_and_b32 v7, 31, v5')
    k('v_lshl_add_u32 v6, v7, 4, v6')
    k(f'v_lshrrev_b32 v7, 1, v{VG}')
    k('v_lshl_add_u32 v6, v7, 9, v6')
    k(f'v_and_b32 v7, 1, v{VG}')
    k('v_lshl_add_u32 v6, v7, 3, v6')
    k(f'buffer_store_dwordx2 v[8:9], v6, s[{SWS}:{SWS+3}], 0 offen sc1')
    k('s_branch L12_ex_done', tag='keep')
    k('L12_ex_k1:', tag='keep')
    k(f'v_lshlrev_b32 v6, 3, v5')
    k(f'v_add_u32 v6, {WS_KF2}, v6')
    k('s_mov_b64 exec, 0xffff')
    k(f'buffer_store_dwordx2 v[8:9], v6, s[{SWS}:{SWS+3}], 0 offen sc1')
    k('s_mov_b64 exec, 0xffff0000')
    k(f'v_mul_f32 v7, {hx(f2u(-LOG2E))}, v{ACCX}')
    k('v_exp_f32 v7, v7')
    k('v_add_f32 v7, 1.0, v7')
    k('v_rcp_f32 v7, v7')
    k(f'v_lshlrev_b32 v6, 2, v5')
    k(f'v_add_u32 v6, {WS_G}, v6')
    k(f'buffer_store_dword v7, v6, s[{SWS}:{SWS+3}], 0 offen sc1')
    k('s_mov_b64 exec, -1')
    k('s_branch L12_ex_done', tag='keep')
    k('L12_ex_v:', tag='keep')
    k('v_lshrrev_b32 v6, 4, v5')
    k('v_mul_u32_u24 v6, 672, v6')
    k(f'v_bfe_u32 v7, v{VJ}, 2, 1')
    k('v_mul_u32_u24 v7, 336, v7')
    k('v_add_u32 v6, v6, v7')
    k(f'v_lshrrev_b32 v7, 3, v{VJ}')
    k('v_lshl_add_u32 v6, v7, 3, v6')
    k(f'v_and_b32 v7, 3, v{VJ}')
    k('v_lshl_add_u32 v6, v7, 1, v6')
    k(f'v_add_u32 v6, {WS_VF}, v6')
    k(f's_bitcmp1_b32 s{HP}, 0')
    k('s_mov_b32 s64, 0x04100800')
    k('s_cselect_b32 s64, 0x0000140c, s64')
    k(f'v_lshlrev_b32 v7, 3, v{VG}')
    k('v_lshrrev_b32 v7, v7, s64')
    k('v_and_b32 v7, 0xff, v7')
    k('v_lshl_add_u32 v6, v7, 4, v6')
    k('s_cselect_b32 s64, 1, 7')
    k(f'v_cmp_eq_u32 vcc, s64, v{VG}')
    k(f'v_cndmask_b32 v{ACCX}, v{ACCX}, 1.0, vcc')
    k(f'v_cvt_pk_bf16_f32 v8, v{ACCX}, v{ACCX+1}')
    k(f'v_cvt_pk_bf16_f32 v9, v{ACCX+2}, v{ACCX+3}')
    k(f's_bitcmp1_b32 s{HP}, 0')
    k('s_cselect_b32 s64, -1, -1')
    k('s_cselect_b32 s65, 0, -1')
    k('s_mov_b64 exec, s[64:65]')
    k(f'buffer_store_short v8, v6, s[{SWS}:{SWS+3}], 0 offen sc1')
    k('s_cselect_b32 s64, 0xffff, -1')
    k('s_mov_b64 exec, s[64:65]')
    k(f'buffer_store_short_d16_hi v8, v6, s[{SWS}:{SWS+3}], 0 offen offset:16 sc1')
    k(f'buffer_store_short v9, v6, s[{SWS}:{SWS+3}], 0 offen offset:32 sc1')
    k(f'buffer_store_short_d16_hi v9, v6, s[{SWS}:{SWS+3}], 0 offen offset:48 sc1')
    k('s_mov_b64 exec, -1')
    k('L12_ex_done:', tag='keep')
    k('s_waitcnt vmcnt(0)')
    k('s_barrier')
    k(f's_cmp_lg_u32 s{WV}, 0')
    k('s_cbranch_scc1 L12_noex', tag='keep')
    k('v_mov_b32 v5, 1')
    k('s_mov_b64 exec, 1')
    k(f'buffer_atomic_add v5, v{ZERO}, s[{SDBG}:{SDBG+3}], 0 offen')
    k('s_mov_b64 exec, -1')
    k('L12_noex:', tag='keep')
    k.pop()
    k.wait_tag('misc')
    k('s_waitcnt lgkmcnt(0)')
    k('s_barrier')

    for rt in range(2):
        for i in range(10):
            k(f'v_cvt_pk_bf16_f32 v{PK + 10*rt + i}, v{ACC1 + 20*rt + 2*i}, v{ACC1 + 20*rt + 2*i + 1}')
    for t in range(5):
        for u in range(5):
            k(f'ds_read_b64_tr_b16 {vr(WF + 10*t + 2*u, 2)}, v{PHA} offset:{u*160 + 8*t}')
    for t in range(5):
        for rt in range(2):
            d = vr(ACC1 + 20 * rt + 4 * t, 4)
            k(f'v_mfma_f32_16x16x32_bf16 {d}, {vr(WF + 10*t, 4)}, {vr(PK + 10*rt, 4)}, 0')
    for t in range(5):
        for rt in range(2):
            d = vr(ACC1 + 20 * rt + 4 * t, 4)
            k(f'v_mfma_f32_16x16x32_bf16 {d}, {vr(WF + 10*t + 4, 4)}, {vr(PK + 10*rt + 4, 4)}, {d}')
    for t in range(5):
        for rt in range(2):
            d = vr(ACC1 + 20 * rt + 4 * t, 4)
            k(f'v_mfma_f32_16x16x16_bf16 {d}, {vr(WF + 10*t + 8, 2)}, {vr(PK + 10*rt + 8, 2)}, {d}')
    k(f's_mov_b32 s64, {hx(f2u(LOG2E))}')
    for rt in range(2):
        P = ACC1 + 20 * rt
        EP, EM = WF, WF + 20
        MX, MN, SP, SM = 2, 4, 6, 8
        k(f'v_max3_f32 v{MX}, v{P}, v{P+1}, v{P+2}')
        k(f'v_min3_f32 v{MN}, v{P}, v{P+1}, v{P+2}')
        for i in range(3, 19, 2):
            k(f'v_max3_f32 v{MX}, v{MX}, v{P+i}, v{P+i+1}')
            k(f'v_min3_f32 v{MN}, v{MN}, v{P+i}, v{P+i+1}')
        k(f'v_max_f32 v{MX}, v{MX}, v{P+19}')
        k(f'v_min_f32 v{MN}, v{MN}, v{P+19}')
        k(f'v_mul_f32 v{MX}, {hx(f2u(-LOG2E))}, v{MX}')
        k(f'v_mul_f32 v{MN}, s64, v{MN}')
        for i in range(0, 20, 2):
            k(f'v_pk_fma_f32 {vr(EP+i,2)}, {vr(P+i,2)}, s[64:65], {vr(MX,2)} op_sel_hi:[1,0,0]')
            k(f'v_pk_fma_f32 {vr(EM+i,2)}, {vr(P+i,2)}, s[64:65], {vr(MN,2)} op_sel_hi:[1,0,0] neg_lo:[1,0,0] neg_hi:[1,0,0]')
        for i in range(40):
            k(f'v_exp_f32 v{EP+i}, v{EP+i}')
        k(f'v_pk_add_f32 {vr(SP,2)}, {vr(EP,2)}, {vr(EP+2,2)}')
        k(f'v_pk_add_f32 {vr(SM,2)}, {vr(EM,2)}, {vr(EM+2,2)}')
        for i in range(4, 20, 2):
            k(f'v_pk_add_f32 {vr(SP,2)}, {vr(SP,2)}, {vr(EP+i,2)}')
            k(f'v_pk_add_f32 {vr(SM,2)}, {vr(SM,2)}, {vr(EM+i,2)}')
        k(f'v_add_f32 v{SP}, v{SP}, v{SP+1}')
        k(f'v_add_f32 v{SM}, v{SM}, v{SM+1}')
        k(f'v_rcp_f32 v{SP}, v{SP}')
        k(f'v_rcp_f32 v{SM}, v{SM}')
        for i in range(0, 20, 2):
            k(f'v_pk_mul_f32 {vr(EP+i,2)}, {vr(EP+i,2)}, {vr(SP,2)} op_sel_hi:[1,0]')
            k(f'v_pk_mul_f32 {vr(EM+i,2)}, {vr(EM+i,2)}, {vr(SM,2)} op_sel_hi:[1,0]')
        for i in range(20):
            k(f'v_cvt_pk_bf16_f32 v{PK+i}, v{EP+2*i}, v{EP+2*i+1}')
        for i in range(5):
            k(f'ds_write_b128 v{PHW}, {vr(PK+4*i,4)} offset:{rt*1280 + 16*i}')

    gemm_pass(1, ACC2, [5, 0, 1, 2, 3], None)
    for rt in range(2):
        P = ACC2 + 20 * rt
        Q = PK
        for i in range(0, 20, 2):
            k(f'v_pk_mul_f32 {vr(P+i,2)}, {vr(P+i,2)}, {vr(SC2,2)} op_sel_hi:[1,0]')
        for i in range(10):
            k(f'v_cvt_pk_bf16_f32 v{Q+i}, v{P+2*i}, v{P+2*i+1}')
        k(f'v_mov_b32 v{Q+10}, v{CST}')
        k(f'v_mov_b32 v{Q+11}, 0')
        for i in range(3):
            k(f'ds_write_b128 v{QBW}, {vr(Q+4*i,4)} offset:{rt*768 + 16*i}')
    k('s_waitcnt lgkmcnt(0)')
    k('s_barrier')

    k(f'v_and_b32 v5, 3, v{LANE}')
    k(f'v_lshrrev_b32 v6, 2, v{VJ}')
    k(f'v_lshl_add_u32 v6, v{VG}, 3, v6')
    k(f'v_mul_u32_u24 v7, 80, v6')
    k(f'v_lshl_add_u32 v7, v5, 3, v7')
    k('s_mul_i32 s64, s67, 10240')
    k(f's_add_u32 s64, s64, {L_PK}')
    k('v_add_u32 v7, s64, v7')
    k(f'v_mul_u32_u24 v8, 48, v6')
    k(f'v_lshl_add_u32 v8, v5, 3, v8')
    k('s_mul_i32 s64, s67, 6144')
    k('s_lshl_b32 s65, s68, 5')
    k('s_add_u32 s64, s64, s65')
    k(f's_add_u32 s64, s64, {L_VA}')
    k('v_add_u32 v8, s64, v8')
    KA, KB, KD = 40, 100, 120
    for s in range(4):
        for tf in range(3):
            for cr in range(2):
                k(f'ds_read_b64_tr_b16 {vr(KA + 12*s + 4*tf + 2*cr, 2)}, v7 offset:{s*2560 + cr*320 + tf*32}')
        for cr in range(2):
            k(f'ds_read_b64_tr_b16 {vr(KB + 4*s + 2*cr, 2)}, v8 offset:{s*1536 + cr*192}')
    for s in range(4):
        for tf in range(3):
            d = vr(KD + 4 * tf, 4)
            k(f'v_mfma_f32_16x16x32_bf16 {d}, {vr(KA + 12*s + 4*tf, 4)}, {vr(KB + 4*s, 4)}, {d if s else 0}')
    k(f's_lshl_b32 s64, s68, 4')
    k(f'v_add_u32 v5, s64, v{VJ}')
    k('v_lshrrev_b32 v6, 2, v5')
    k('s_cmp_eq_u32 s68, 0')
    k('s_mov_b32 s64, 0x0000140c')
    k('s_cselect_b32 s64, 0x04100800, s64')
    k('v_and_b32 v6, 3, v6')
    k('v_lshlrev_b32 v6, 3, v6')
    k('v_lshrrev_b32 v6, v6, s64')
    k('v_and_b32 v6, 0xff, v6')
    k('v_and_b32 v7, 3, v5')
    k('v_add_u32 v6, v6, v7')
    k('v_mul_u32_u24 v6, 160, v6')
    k(f'v_lshl_add_u32 v6, v{VG}, 4, v6')
    k('v_mov_b32 v7, 0x80000000')
    k('v_cmp_lt_u32 vcc, 20, v5')
    k('v_cndmask_b32 v6, v6, v7, vcc')
    k(f'v_cmp_lt_u32 vcc, 1, v{VG}')
    k('v_cndmask_b32 v7, v6, v7, vcc')
    k(f's_lshl_b32 s64, s{HP}, 1')
    k('s_add_u32 s64, s64, s67')
    k('s_lshl_b32 s64, s64, 4')
    k(f's_add_u32 s64, s64, s{RB}')
    k('s_mul_i32 s64, s64, 3360')
    k(f's_add_u32 s64, s64, {WS_KVP}')
    for tf in range(3):
        k(f'buffer_store_dwordx4 {vr(KD + 4*tf, 4)}, v{6 if tf < 2 else 7}, s[{SWS}:{SWS+3}], s64 offen offset:{64*tf} sc1')
    S0, PB, OB, QF = 40, 72, 88, 120
    QF = 132
    k(f'v_and_b32 v5, 31, v{LANE}')
    k(f'v_lshrrev_b32 v9, 5, v{LANE}')
    k('v_mul_u32_u24 v6, 48, v5')
    k(f'v_add_u32 v6, {L_QB}, v6')
    k('v_lshl_add_u32 v7, v9, 3, v6')
    k('v_lshl_add_u32 v6, v9, 4, v6')
    for n in range(8):
        off = (n // 4) * 6144 + (n % 4) * 1536
        k(f'ds_read_b128 {vr(QF + 6*n, 4)}, v6 offset:{off}')
        k(f'ds_read_b64 {vr(QF + 6*n + 4, 2)}, v7 offset:{off + 32}')
    k('s_waitcnt vmcnt(0) lgkmcnt(0)')
    k('s_barrier')
    k.push()
    k(f's_cmp_lg_u32 s{WV}, 0')
    k('s_cbranch_scc1 L12_nosig2')
    k('v_mov_b32 v5, 1')
    k(f's_lshl_b32 s64, s{HP}, 2')
    k('s_add_u32 s64, s64, 64')
    k('s_mov_b64 exec, 1')
    k(f'buffer_atomic_add v5, v{ZERO}, s[{SDBG}:{SDBG+3}], s64 offen')
    k('s_mov_b64 exec, -1')
    k('L12_nosig2:')
    k.pop()

    def poll(label, soff_sgpr_or_imm, target):
        k('s_mov_b32 s75, 0')
        k(f'{label}:')
        k(f'buffer_load_dword v5, v{ZERO}, s[{SDBG}:{SDBG+3}], {soff_sgpr_or_imm} offen sc1')
        k('s_waitcnt vmcnt(0)')
        k('v_readfirstlane_b32 s64, v5')
        k('s_add_u32 s75, s75, 1')
        k(f's_cmp_ge_u32 s64, {target}')
        k(f's_cbranch_scc1 {label}_ok')
        k('s_sleep 2')
        k('s_cmp_lt_u32 s75, 0x100000')
        k(f's_cbranch_scc1 {label}')
        k(f'{label}_ok:')
    poll('L12_poll1', '0', 128)
    KF1A, KF2A, VFA = 0, 64, 96
    k(f'v_lshlrev_b32 v5, 4, v{LANE}')
    k(f'v_and_b32 v8, 31, v{LANE}')
    k(f'v_lshlrev_b32 v6, 3, v8')
    k(f'v_add_u32 v6, {WS_KF2}, v6')
    k('v_cmp_gt_u32 vcc, 20, v8')
    k(f'v_cndmask_b32 v7, v{ZERO}, v8, vcc')
    k('v_and_b32 v2, 27, v8')
    k('v_cmp_eq_u32 vcc, 24, v2')
    k('v_cndmask_b32 v7, v7, 20, vcc')
    k('v_lshlrev_b32 v7, 4, v7')
    k('v_mul_u32_u24 v2, 336, v9')
    k(f'v_add3_u32 v7, v7, v2, v{ZERO}')
    k(f'v_add_u32 v7, {WS_VF}, v7')
    k(f's_lshl_b32 s76, s{WV}, 14')
    k(f's_lshl_b32 s77, s{WV}, 12')
    k(f's_mul_i32 s78, s{WV}, {32*672}')
    for t in range(16):
        if t and t % 4 == 0:
            k('s_add_u32 s76, s76, 4096')
        k(f'buffer_load_dwordx4 {ar(KF1A + 4*t, 4)}, v5, s[{SWS}:{SWS+3}], s76 offen offset:{(t%4)*1024} sc1')
        k(f'buffer_load_dwordx2 {ar(KF2A + 2*t, 2)}, v6, s[{SWS}:{SWS+3}], s77 offen offset:{t*256} sc1')
        for e in range(2):
            gidx = 2 * t + e
            if gidx and gidx % 6 == 0:
                k(f's_add_u32 s78, s78, {6*672}')
            k(f'buffer_load_dwordx4 {ar(VFA + 4*gidx, 4)}, v7, s[{SWS}:{SWS+3}], s78 offen offset:{(gidx%6)*672} sc1')
    OWA, OWB = 10, 11
    k(f's_mul_i32 s64, s{WV}, {OPART}')
    k(f'v_lshlrev_b32 v{OWA}, 4, v{LANE}')
    k(f'v_add_u32 v{OWA}, s64, v{OWA}')
    k(f'v_lshlrev_b32 v{OWB}, 2, v{LANE}')
    k(f'v_add_u32 v{OWB}, s64, v{OWB}')
    k(f'v_add_u32 v12, {4*4*OPART}, v{OWA}')
    k(f'v_add_u32 v13, {4*4*OPART}, v{OWB}')

    def qk(T):
        n, t = divmod(T, 16)
        S = S0 + 16 * (T % 2)
        return [f'v_mfma_f32_32x32x16_bf16 {vr(S,16)}, {ar(KF1A + 4*t, 4)}, {vr(QF + 6*n, 4)}, 0',
                f'v_mfma_f32_32x32x8_bf16 {vr(S,16)}, {ar(KF2A + 2*t, 2)}, {vr(QF + 6*n + 4, 2)}, {vr(S,16)}']

    def pv(T):
        n, t = divmod(T, 16)
        O = OB + 16 * (n % 2)
        P = PB + 8 * (T % 2)
        return [f'v_mfma_f32_32x32x16_bf16 {vr(O,16)}, {ar(VFA + 8*t, 4)}, {vr(P, 4)}, {vr(O,16) if t else 0}',
                f'v_mfma_f32_32x32x16_bf16 {vr(O,16)}, {ar(VFA + 8*t + 4, 4)}, {vr(P + 4, 4)}, {vr(O,16)}']

    def owrite(n):
        O = OB + 16 * (n % 2)
        a, b = (OWA, OWB) if n < 4 else (12, 13)
        off = (n % 4) * 4 * OPART
        return [f'ds_write_b128 v{a}, {vr(O + 4*i, 4)} offset:{off + 1024*i}' for i in range(3)] + \
               [f'ds_write_b32 v{b}, v{O+12} offset:{off + 3072}']

    k.extend(qk(0))
    NT = 128
    for T in range(NT):
        S = S0 + 16 * (T % 2)
        P = PB + 8 * (T % 2)
        ex = [f'v_exp_f32 v{S+i}, v{S+i}' for i in range(16)]
        cv = [f'v_cvt_pk_bf16_f32 v{P+i}, v{S+2*i}, v{S+2*i+1}' for i in range(8)]
        q = qk(T + 1) if T + 1 < NT else []
        p = pv(T - 1) if T > 0 else []
        seq = q[0:1] + ex[0:4] + cv[0:1] + p[0:1] + ex[4:8] + cv[1:3] + q[1:2] + ex[8:12] + cv[3:5] + p[1:2] + ex[12:16] + cv[5:8]
        if T % 16 == 1 and T > 16:
            ow = owrite(T // 16 - 1)
            seq = seq[:6] + ow[0:1] + seq[6:12] + ow[1:2] + seq[12:18] + ow[2:3] + seq[18:24] + ow[3:4] + seq[24:]
        k.extend(seq)
    k.extend(pv(NT - 1))
    k.extend(owrite(7))

    k(f's_lshl_b32 s79, s{HP}, 2')
    k('s_add_u32 s79, s79, 64')
    k('s_waitcnt lgkmcnt(0)')
    poll('L12_poll2', 's79', 16)
    R = 40
    for half in range(2):
        k(f'v_add_u32 v5, {256*half}, v0')
        k('v_cmp_le_u32 vcc, 210, v5')
        k(f'v_cndmask_b32 v6, 0, 1, vcc')
        k('v_mul_u32_u24 v7, 210, v6')
        k('v_sub_u32 v7, v5, v7')
        k(f'v_mul_u32_u24 v8, {16*3360}, v6')
        k(f'v_lshl_add_u32 v{14+half}, v7, 4, v8')
        k('v_mul_u32_u24 v8, 1680, v6')
        k(f'v_lshl_add_u32 v{16+half}, v7, 3, v8')
        k(f'v_add_u32 v{16+half}, {L_KVT}, v{16+half}')
        if half == 1:
            k('v_mov_b32 v8, 0x80000000')
            k('v_cmp_le_u32 vcc, 420, v5')
            k(f'v_cndmask_b32 v15, v15, v8, vcc')
            k(f'v_mov_b32 v8, {L_KVT + 3360}')
            k(f'v_cndmask_b32 v17, v17, v8, vcc')
    k(f's_mul_i32 s64, s{HP}, {2*16*3360}')
    k(f's_add_u32 s64, s64, {WS_KVP}')
    for p in range(16):
        for half in range(2):
            k(f'buffer_load_dwordx4 {vr(R + 64*half + 4*p, 4)}, v{14+half}, s[{SWS}:{SWS+3}], s64 offen sc1')
        k('s_add_u32 s64, s64, 3360')
    k(f'v_and_b32 v8, 31, v{LANE}')
    k(f's_lshl_b32 s64, s{RB}, 7')
    k('s_lshl_b32 s65, s68, 6')
    k('s_add_u32 s80, s64, s65')
    k('v_add_u32 v5, s80, v8')
    k('v_lshlrev_b32 v6, 2, v5')
    k(f'v_add_u32 v6, {WS_G}, v6')
    k(f'buffer_load_dword v18, v6, s[{SWS}:{SWS+3}], 0 offen sc1')
    k(f'buffer_load_dword v19, v6, s[{SWS}:{SWS+3}], 0 offen offset:128 sc1')
    for half in range(2):
        B = R + 64 * half
        for p in range(1, 16):
            k(f'v_pk_add_f32 {vr(B,2)}, {vr(B,2)}, {vr(B+4*p,2)}')
            k(f'v_pk_add_f32 {vr(B+2,2)}, {vr(B+2,2)}, {vr(B+4*p+2,2)}')
        k(f'v_cvt_pk_bf16_f32 v{B}, v{B}, v{B+1}')
        k(f'v_cvt_pk_bf16_f32 v{B+1}, v{B+2}, v{B+3}')
        k(f'ds_write_b64 v{16+half}, {vr(B,2)}')
    k('s_waitcnt lgkmcnt(0)')
    k('s_barrier')
    k('v_cmp_gt_u32 vcc, 20, v8')
    k(f'v_cndmask_b32 v7, v{ZERO}, v8, vcc')
    k('v_and_b32 v2, 27, v8')
    k('v_cmp_eq_u32 vcc, 24, v2')
    k('v_cndmask_b32 v7, v7, 20, vcc')
    k('v_mul_u32_u24 v7, 80, v7')
    k('s_mul_i32 s64, s67, 1680')
    k(f's_add_u32 s64, s64, {L_KVT}')
    k('v_add_u32 v7, s64, v7')
    k('v_lshl_add_u32 v6, v9, 4, v7')
    k('v_lshl_add_u32 v7, v9, 3, v7')
    KVF = 40
    k(f'ds_read_b128 {vr(KVF,4)}, v6')
    k(f'ds_read_b128 {vr(KVF+4,4)}, v6 offset:32')
    k(f'ds_read_b64 {vr(KVF+8,2)}, v7 offset:64')
    k('v_mul_u32_u24 v7, 80, v8')
    k('s_mul_i32 s64, s67, 10240')
    k('s_mul_i32 s65, s68, 5120')
    k('s_add_u32 s64, s64, s65')
    k(f's_add_u32 s64, s64, {L_PQ}')
    k('v_add_u32 v7, s64, v7')
    k('v_lshl_add_u32 v6, v9, 4, v7')
    k('v_lshl_add_u32 v7, v9, 3, v7')
    PF, NA, OP = 52, 72, 104
    for e in range(2):
        k(f'ds_read_b128 {vr(PF + 10*e, 4)}, v6 offset:{2560*e}')
        k(f'ds_read_b128 {vr(PF + 10*e + 4, 4)}, v6 offset:{2560*e + 32}')
        k(f'ds_read_b64 {vr(PF + 10*e + 8, 2)}, v7 offset:{2560*e + 64}')
    for e in range(2):
        d = vr(NA + 16 * e, 16)
        k(f'v_mfma_f32_32x32x16_bf16 {d}, {vr(KVF,4)}, {vr(PF + 10*e, 4)}, 0')
    for e in range(2):
        d = vr(NA + 16 * e, 16)
        k(f'v_mfma_f32_32x32x16_bf16 {d}, {vr(KVF+4,4)}, {vr(PF + 10*e + 4, 4)}, {d}')
    for e in range(2):
        d = vr(NA + 16 * e, 16)
        k(f'v_mfma_f32_32x32x8_bf16 {d}, {vr(KVF+8,2)}, {vr(PF + 10*e + 8, 2)}, {d}')
    k(f's_mul_i32 s64, s{WV}, {8*OPART}')
    k(f'v_lshlrev_b32 v6, 4, v{LANE}')
    k('v_add_u32 v6, s64, v6')
    k(f'v_lshlrev_b32 v7, 2, v{LANE}')
    k('v_add_u32 v7, s64, v7')
    for e in range(2):
        for w2 in range(4):
            B = OP + 56 * e + 14 * w2
            off = (4 * e + w2) * OPART
            for i in range(3):
                k(f'ds_read_b128 {vr(B + 4*i, 4)}, v6 offset:{off + 1024*i}')
            k(f'ds_read_b32 v{B+12}, v7 offset:{off + 3072}')
    k('v_mul_u32_u24 v6, 80, v5')
    k('v_mul_u32_u24 v7, 24, v9')
    k('v_add_u32 v6, v6, v7')
    k(f's_mul_i32 s64, s{HP}, 163840')
    k('s_mul_i32 s65, s67, 40')
    k('s_add_u32 s64, s64, s65')
    k(f's_add_u32 s81, s64, {WS_OA}')
    k(f's_add_u32 s82, s64, {WS_OB}')
    k('v_mov_b32 v7, 0x80000000')
    k('v_cmp_eq_u32 vcc, 0, v9')
    k('v_cndmask_b32 v7, v7, v6, vcc')
    for e in range(2):
        B = OP + 56 * e
        for w2 in range(1, 4):
            for i in range(0, 12, 2):
                k(f'v_pk_add_f32 {vr(B+i,2)}, {vr(B+i,2)}, {vr(B+14*w2+i,2)}')
            k(f'v_add_f32 v{B+12}, v{B+12}, v{B+14*w2+12}')
        N = NA + 16 * e
        k(f'v_rcp_f32 v2, v{B+12}')
        k(f'v_add_f32 v{N+12}, {hx(f2u(1e-6))}, v{N+12}')
        k(f'v_rcp_f32 v4, v{N+12}')
        k(f'v_sub_f32 v3, 1.0, v{18+e}')
        k(f'v_mul_f32 v2, v2, v3')
        k(f'v_mul_f32 v4, v4, v{18+e}')
        for i in range(0, 12, 2):
            k(f'v_pk_mul_f32 {vr(B+i,2)}, {vr(B+i,2)}, {vr(2,2)} op_sel_hi:[1,0]')
            k(f'v_pk_mul_f32 {vr(N+i,2)}, {vr(N+i,2)}, {vr(4,2)} op_sel_hi:[1,0]')
        for i in range(6):
            k(f'v_cvt_pk_bf16_f32 v{B+i}, v{B+2*i}, v{B+2*i+1}')
            k(f'v_cvt_pk_bf16_f32 v{N+i}, v{N+2*i}, v{N+2*i+1}')
        k(f'buffer_store_dwordx4 {vr(N,4)}, v6, s[{SWS}:{SWS+3}], s81 offen offset:{2560*e}')
        k(f'buffer_store_dwordx2 {vr(N+4,2)}, v7, s[{SWS}:{SWS+3}], s81 offen offset:{2560*e + 16}')
        k(f'buffer_store_dwordx4 {vr(B,4)}, v6, s[{SWS}:{SWS+3}], s82 offen offset:{2560*e}')
        k(f'buffer_store_dwordx2 {vr(B+4,2)}, v7, s[{SWS}:{SWS+3}], s82 offen offset:{2560*e + 16}')
    k('L12_end:', tag='nopad')
    k('s_endpgm')
    k('L12_codeend:', tag='nopad')
    return k.text()


def gen_k3():
    k = Asm()
    SO, SWO, SOUT = 4, 8, 12
    WV = 38
    LANE, VG, VJ = 1, 37, 38
    TRB, DV, BV = 10, 12, 17
    ACC, AF = 40, 124
    k('k3_kernel:')
    k('s_cmp_ge_u32 s2, 256')
    k('s_cbranch_scc1 L3_end')
    k('s_load_dwordx2 s[40:41], s[0:1], 24')
    k('s_load_dwordx2 s[42:43], s[0:1], 64')
    k('s_load_dwordx2 s[44:45], s[0:1], 80')
    k('s_load_dwordx2 s[46:47], s[0:1], 96')
    code_prefetch(k, 'k3', 'L3_codeend', 16384, 2, 4, 60)
    k(f'v_and_b32 v{LANE}, 63, v0')
    k(f'v_lshrrev_b32 v5, 6, v0')
    k(f'v_readfirstlane_b32 s{WV}, v5')
    k('s_and_b32 s62, s2, 7')
    k('s_lshr_b32 s63, s2, 3')
    k('s_and_b32 s64, s62, 3')
    k('s_lshl_b32 s64, s64, 3')
    k('s_and_b32 s65, s63, 7')
    k('s_add_u32 s36, s64, s65')
    k('s_lshr_b32 s64, s62, 2')
    k('s_lshl_b32 s64, s64, 2')
    k('s_lshr_b32 s65, s63, 3')
    k('s_add_u32 s37, s64, s65')
    k(f'v_lshrrev_b32 v{VG}, 4, v{LANE}')
    k(f'v_and_b32 v{VJ}, 15, v{LANE}')
    for i in range(5):
        k(f'v_add_u32 v5, {64*i}, v{LANE}')
        k(f'v_mul_u32_u24 v6, 205, v5')
        k(f'v_lshrrev_b32 v6, 11, v6')
        k(f'v_mul_u32_u24 v7, 10, v6')
        k(f'v_sub_u32 v9, v5, v7')
        k(f'v_and_b32 v7, 0x13, v6')
        k(f'v_and_b32 v8, 4, v6')
        k(f'v_lshl_add_u32 v7, v8, 1, v7')
        k(f'v_and_b32 v8, 8, v6')
        k(f'v_lshrrev_b32 v8, 1, v8')
        k(f'v_add_u32 v7, v7, v8')
        k(f'v_mul_u32_u24 v7, 1280, v7')
        k(f'v_lshl_add_u32 v{DV+i}, v9, 4, v7')
    for s5 in range(5):
        k(f'v_add_u32 v5, {4*s5}, v{VG}')
        k(f'v_mul_u32_u24 v6, 205, v5')
        k(f'v_lshrrev_b32 v6, 10, v6')
        k(f'v_mul_u32_u24 v7, 5, v6')
        k(f'v_sub_u32 v7, v5, v7')
        k(f'v_mul_u32_u24 v6, 163840, v6')
        k(f'v_lshl_add_u32 v6, v7, 4, v6')
        k(f'v_mul_u32_u24 v7, 80, v{VJ}')
        k(f'v_add_u32 v{BV+s5}, v6, v7')
    k(f'v_and_b32 v5, 3, v{LANE}')
    k(f'v_lshrrev_b32 v6, 2, v{VJ}')
    k(f'v_lshrrev_b32 v7, 1, v{VG}')
    k(f'v_lshl_add_u32 v6, v7, 4, v6')
    k(f'v_and_b32 v7, 1, v{VG}')
    k(f'v_lshl_add_u32 v6, v7, 2, v6')
    k(f'v_mul_u32_u24 v6, 160, v6')
    k(f'v_mul_u32_u24 v7, 40, v5')
    k(f'v_add_u32 v6, v6, v7')
    k(f's_mul_i32 s70, s{WV}, 40960')
    k(f'v_add_u32 v{TRB}, s70, v6')
    k('s_waitcnt lgkmcnt(0)')
    srd(k, SO, 46, 47, WS_SIZE)
    srd(k, SOUT, 44, 45, 2048 * 1280)
    k(f's_cmp_lt_u32 s{WV}, 2')
    k('s_cselect_b32 s64, s40, s42')
    k('s_cselect_b32 s65, s41, s43')
    k(f's_mov_b32 s71, {WS_OB}')
    k(f's_cselect_b32 s71, {WS_OA}, s71')
    srd(k, SWO, 64, 65, 640 * 1280)
    k(f's_and_b32 s68, s{WV}, 1')
    k('s_mul_i32 s72, s68, 409600')
    k('s_mul_i32 s64, s37, 160')
    k('s_add_u32 s72, s72, s64')
    k(f's_mul_i32 s64, s68, {8*163840}')
    k('s_add_u32 s71, s71, s64')
    k('s_mul_i32 s64, s36, 5120')
    k('s_add_u32 s71, s71, s64')
    k('s_add_u32 s73, s71, 2560')
    k(f's_add_u32 s74, s71, {4*163840}')
    k('s_add_u32 s75, s74, 2560')

    def dma(s):
        for i in range(5):
            k(f's_add_u32 m0, s70, {(s%8)*5120 + i*1024}')
            k(f'buffer_load_dwordx4 v{DV+i}, s[{SWO}:{SWO+3}], s72 offen lds', tag=('w', s))
        k('s_add_u32 s72, s72, 40960')

    def bload(s):
        for rt in range(4):
            so = [[71, 73], [74, 75]][s // 5][rt // 2]
            k(f'buffer_load_dwordx4 {ar((rt*10 + s)*4, 4)}, v{BV + s%5}, s[{SO}:{SO+3}], s{so} offen offset:{(rt%2)*1280}')

    for s in range(8):
        dma(s)
        bload(s)
    bload(8)
    bload(9)

    def tr_reads(s):
        out = []
        for t in range(5):
            for cr in range(2):
                out.append(f'ds_read_b64_tr_b16 {vr(AF + 20*(s%2) + 4*t + 2*cr, 2)}, v{TRB} offset:{(s%8)*5120 + cr*1280 + 8*t}')
        return out
    k.wait_tag(('w', 0))
    k.extend(tr_reads(0))
    for s in range(10):
        nxt = []
        if s + 1 < 10:
            if s in (1, 2):
                dma(s + 7)
            k.wait_tag(('w', s + 1))
            nxt = tr_reads(s + 1)
        mf = []
        for t in range(5):
            for rt in range(4):
                d = vr(ACC + 20 * rt + 4 * t, 4)
                mf.append(f'v_mfma_f32_16x16x32_bf16 {d}, {vr(AF + 20*(s%2) + 4*t, 4)}, {ar((rt*10 + s)*4, 4)}, {d if s else 0}')
        k.extend(interleave(mf, nxt))
    k(f'v_lshlrev_b32 v5, 4, v{LANE}')
    k('v_add_u32 v6, s70, v5')
    for rt in range(4):
        for t in range(5):
            k(f'ds_write_b128 v6, {vr(ACC + 20*rt + 4*t, 4)} offset:{(rt*5+t)*1024}')
    k('s_waitcnt lgkmcnt(0)')
    k('s_barrier')
    k(f's_mul_i32 s64, s{WV}, 5120')
    k('v_add_u32 v6, s64, v5')
    k('v_add_u32 v7, 81920, v6')
    R = 40
    for w2 in range(4):
        for t in range(5):
            k(f'ds_read_b128 {vr(R + 20*w2 + 4*t, 4)}, v{6 if w2 < 2 else 7} offset:{(w2%2)*40960 + t*1024}')
    for w2 in range(1, 4):
        for i in range(0, 20, 2):
            k(f'v_pk_add_f32 {vr(R+i,2)}, {vr(R+i,2)}, {vr(R+20*w2+i,2)}')
    for i in range(10):
        k(f'v_cvt_pk_bf16_f32 v{R+i}, v{R+2*i}, v{R+2*i+1}')
    k('s_lshl_b32 s64, s36, 6')
    k(f's_lshl_b32 s65, s{WV}, 4')
    k('s_add_u32 s64, s64, s65')
    k(f'v_add_u32 v5, s64, v{VJ}')
    k('v_mul_u32_u24 v5, 1280, v5')
    k(f'v_mul_u32_u24 v6, 40, v{VG}')
    k('v_add_u32 v5, v5, v6')
    k('s_mul_i32 s64, s37, 160')
    k(f'buffer_store_dwordx4 {vr(R,4)}, v5, s[{SOUT}:{SOUT+3}], s64 offen')
    k(f'buffer_store_dwordx4 {vr(R+4,4)}, v5, s[{SOUT}:{SOUT+3}], s64 offen offset:16')
    k(f'buffer_store_dwordx2 {vr(R+8,2)}, v5, s[{SOUT}:{SOUT+3}], s64 offen offset:32')
    k('L3_end:', tag='nopad')
    k('s_endpgm')
    k('L3_codeend:', tag='nopad')
    return k.text()


HEADER = open('cdna_kernels/' + NAME + '.s.ref').read().split('; Override launch')[0]


def kd(name, vgpr, accoff):
    return f""".amdhsa_kernel {name}
  .amdhsa_next_free_vgpr {vgpr}
  .amdhsa_next_free_sgpr 102
  .amdhsa_accum_offset {accoff}
  .amdhsa_group_segment_fixed_size 0
  .amdhsa_kernarg_size 104
  .amdhsa_user_sgpr_count 2
  .amdhsa_user_sgpr_kernarg_segment_ptr 1
  .amdhsa_system_sgpr_workgroup_id_x 1
.end_amdhsa_kernel
"""


def build():
    s = HEADER
    s += f'; @launch kernel=k12_kernel grid=(256,1,1) block=(256,1,1) lds={LDS12}\n'
    s += f'; @launch kernel=k3_kernel grid=(256,1,1) block=(256,1,1) lds=163840\n'
    s += '.amdgcn_target "amdgcn-amd-amdhsa--gfx950"\n.text\n'
    for nm, body in (('k12_kernel', gen_k12()), ('k3_kernel', gen_k3())):
        s += f'.globl {nm}\n.p2align 8\n.type {nm},@function\n' + body
    s += '.section .rodata,"a"\n.p2align 6\n'
    s += kd('k12_kernel', 512, 256)
    s += '.p2align 6\n'
    s += kd('k3_kernel', 512, 256)
    return s


if __name__ == '__main__':
    out = sys.argv[1] if len(sys.argv) > 1 else 'cdna_kernels/' + NAME + '.s'
    open(out, 'w').write(build())
    print('wrote', out)
```

```python
import re

REG_RE = re.compile(r'\b([vas])(\d+)\b|\b([vas])\[(\d+):(\d+)\]')
SPECIAL = ('vcc', 'exec', 'm0', 'scc')

TRANS = ('v_exp_f32', 'v_log_f32', 'v_rcp_f32', 'v_rsq_f32', 'v_sqrt_f32', 'v_sin_f32', 'v_cos_f32')


def regs_of(tok):
    out = []
    for m in REG_RE.finditer(tok):
        if m.group(1):
            out.append((m.group(1), int(m.group(2))))
        else:
            for i in range(int(m.group(4)), int(m.group(5)) + 1):
                out.append((m.group(3), i))
    t = tok.strip()
    for s in ('vcc', 'exec', 'm0'):
        if re.search(r'\b' + s + r'(_lo|_hi)?\b', t):
            out.append((s, 0))
    return out


def split_ops(s):
    ops, depth, cur = [], 0, ''
    for ch in s:
        if ch == '[':
            depth += 1
        if ch == ']':
            depth -= 1
        if ch == ',' and depth == 0:
            ops.append(cur.strip())
            cur = ''
        else:
            cur += ch
    if cur.strip():
        ops.append(cur.strip())
    return ops


class Ins:
    __slots__ = ('text', 'mn', 'kind', 'dst', 'src', 'passes', 'srcc', 'tag', 'ws', 'srcab')

    def __init__(self, text, tag=None):
        self.text = text
        self.tag = tag
        self.passes = 0
        self.srcc = []
        self.srcab = []
        t = text.split(';')[0].strip()
        parts = t.split(None, 1)
        self.mn = mn = parts[0] if parts else ''
        rest = parts[1] if len(parts) > 1 else ''
        ops = split_ops(rest)
        ops2 = []
        for o in ops:
            ops2.append(o)
        self.dst, self.src = [], []
        self.ws = 1
        if mn.endswith(':') or mn.startswith('.'):
            self.kind = 'label'
            self.ws = 0
        elif mn == 's_nop':
            self.kind = 'nop'
            self.ws = int(ops[0], 0) + 1
        elif mn == 's_waitcnt':
            self.kind = 'wait'
        elif mn == 's_barrier':
            self.kind = 'barrier'
        elif mn.startswith('s_cbranch') or mn in ('s_branch', 's_endpgm', 's_setpc_b64', 's_swappc_b64'):
            self.kind = 'branch'
            if 'vcc' in mn:
                self.src = [('vcc', 0)]
            if 'exec' in mn:
                self.src = [('exec', 0)]
        elif mn.startswith('s_load') or mn.startswith('s_memtime') or mn.startswith('s_memrealtime') or mn.startswith('s_buffer_load'):
            self.kind = 'smem'
            self.dst = regs_of(ops[0])
            for o in ops[1:]:
                self.src += regs_of(o)
        elif mn.startswith('s_'):
            self.kind = 'salu'
            if mn.startswith('s_cmp') or mn in ('s_sleep', 's_setprio', 's_bitcmp0_b32', 's_bitcmp1_b32'):
                for o in ops:
                    self.src += regs_of(o)
            else:
                self.dst = regs_of(ops[0]) if ops else []
                for o in ops[1:]:
                    self.src += regs_of(o)
                if 'saveexec' in mn:
                    self.dst.append(('exec', 0))
        elif mn.startswith('v_mfma'):
            self.kind = 'mfma'
            self.dst = regs_of(ops[0])
            self.srcab = regs_of(ops[1]) + regs_of(ops[2])
            self.srcc = regs_of(ops[3])
            self.src = self.srcab + self.srcc
            self.passes = 8 if '32x32' in mn else 4
        elif mn.startswith('v_'):
            self.kind = 'trans' if mn.replace('_e32', '').replace('_e64', '') in TRANS else 'valu'
            if mn.startswith('v_cmp'):
                self.dst = regs_of(ops[0])
                for o in ops[1:]:
                    self.src += regs_of(o)
                if mn.startswith('v_cmpx'):
                    self.dst.append(('exec', 0))
            elif mn.startswith('v_permlane') and 'swap' in mn:
                self.dst = regs_of(ops[0]) + regs_of(ops[1])
                self.src = list(self.dst)
            elif mn.startswith('v_add_co') or mn.startswith('v_sub_co') or mn.startswith('v_addc_co') or mn.startswith('v_subb_co'):
                self.dst = regs_of(ops[0]) + regs_of(ops[1])
                for o in ops[2:]:
                    self.src += regs_of(o)
            else:
                self.dst = regs_of(ops[0])
                for o in ops[1:]:
                    self.src += regs_of(o)
                if mn.startswith('v_fmac') or mn.startswith('v_pk_fmac') or 'UNUSED_PRESERVE' in text or mn.startswith('v_writelane'):
                    self.src += self.dst
        elif mn.startswith('ds_'):
            if mn.startswith('ds_read') or 'bpermute' in mn or 'swizzle' in mn or mn.startswith('ds_permute'):
                self.kind = 'ldsr'
                self.dst = regs_of(ops[0])
                for o in ops[1:]:
                    self.src += regs_of(o)
            else:
                self.kind = 'ldsw'
                for o in ops:
                    self.src += regs_of(o)
        elif mn.startswith('buffer_') or mn.startswith('global_'):
            isld = '_load' in mn
            lds = bool(re.search(r'\blds\b', rest)) or '_lds_' in mn
            if mn in ('buffer_wbl2', 'buffer_inv'):
                self.kind = 'vst'
            elif lds:
                self.kind = 'dma'
                for o in ops:
                    self.src += regs_of(o)
                self.src.append(('m0', 0))
            elif isld:
                self.kind = 'vld'
                self.dst = regs_of(ops[0])
                for o in ops[1:]:
                    self.src += regs_of(o)
                if 'd16' in mn:
                    self.src += self.dst
            elif 'atomic' in mn:
                self.kind = 'vst'
                for o in ops:
                    self.src += regs_of(o)
                if re.search(r'\bsc0\b', rest):
                    self.kind = 'vld'
                    self.dst = regs_of(ops[0])
            else:
                self.kind = 'vst'
                for o in ops:
                    self.src += regs_of(o)
        else:
            raise ValueError('unknown instruction: ' + text)


class Asm:
    def __init__(self):
        self.items = []

    def __call__(self, text, tag=None):
        for line in text.strip().split('\n'):
            line = line.strip()
            if not line or line.startswith(';'):
                continue
            self.items.append(Ins(line, tag))
        return self

    def ins(self, text, tag=None):
        return Ins(text, tag)

    def extend(self, lst):
        for x in lst:
            if isinstance(x, str):
                self(x)
            else:
                self.items.append(x)

    def wait_tag(self, tag):
        i = Ins('s_waitcnt')
        i.kind = 'waittag'
        i.tag = tag
        self.items.append(i)

    def wait_lds(self):
        self('s_waitcnt lgkmcnt(0)')

    def mark(self, tag):
        i = Ins('s_waitcnt')
        i.kind = 'mark'
        i.tag = tag
        self.items.append(i)

    def push(self):
        i = Ins('s_waitcnt')
        i.kind = 'push'
        self.items.append(i)

    def pop(self):
        i = Ins('s_waitcnt')
        i.kind = 'pop'
        self.items.append(i)

    def finalize(self, check_flow=True):
        out = []
        vmq = []
        lgq = []
        pos = 0
        lastw = {}
        mfma_srcc = {}
        store_data = {}

        def emit(i):
            nonlocal pos
            out.append(i)
            pos += i.ws

        def after(idx):
            return sum(1 for o in vmq[idx + 1:] if o.kind != 'mark')

        def trim(n):
            nonlocal vmq
            cnt = 0
            for p in range(len(vmq) - 1, -1, -1):
                if vmq[p].kind != 'mark':
                    if cnt == n:
                        vmq = vmq[p + 1:]
                        while vmq and vmq[0].kind == 'mark':
                            vmq = vmq[1:]
                        return
                    cnt += 1
            if n <= cnt:
                while vmq and vmq[0].kind == 'mark' and cnt == n:
                    vmq = vmq[1:]

        def emit_wait(vm=None, lg=None):
            nonlocal vmq, lgq
            parts = []
            if vm is not None:
                vm = min(vm, 63)
                parts.append(f'vmcnt({vm})')
                trim(vm)
            if lg is not None:
                lg = min(lg, 15)
                parts.append(f'lgkmcnt({lg})')
                lgq = lgq[len(lgq) - lg:] if lg > 0 else []
            if parts:
                emit(Ins('s_waitcnt ' + ' '.join(parts)))

        stack = []
        for i in self.items:
            if i.kind == 'push':
                stack.append((list(vmq), list(lgq)))
                continue
            if i.kind == 'pop':
                ovm, olg = stack.pop()
                for o in vmq + lgq:
                    if o.dst and o not in ovm and o not in olg:
                        raise AssertionError('region leaves loads in flight: ' + o.text)
                vmq, lgq = ovm, olg
                continue
            if i.kind == 'waittag':
                idx = [n for n, o in enumerate(vmq) if o.tag == i.tag]
                if idx:
                    emit_wait(vm=after(max(idx)))
                continue
            if i.kind == 'mark':
                vmq.append(i)
                continue
            if i.kind == 'wait':
                m = re.search(r'vmcnt\((\d+)\)', i.text)
                if m:
                    n = int(m.group(1))
                    if n == 0:
                        vmq = []
                    else:
                        trim(n)
                m = re.search(r'lgkmcnt\((\d+)\)', i.text)
                if m:
                    n = int(m.group(1))
                    lgq = lgq[len(lgq) - n:] if 0 < n < len(lgq) else ([] if n == 0 else lgq)
                emit(i)
                continue
            if i.kind in ('label', 'branch'):
                if check_flow and i.mn != 's_endpgm' and not i.mn.startswith('.'):
                    pend = [o for o in vmq if o.dst] + [o for o in lgq if o.dst]
                    if pend and not (i.tag in ('keep', 'nopad')):
                        raise AssertionError(f'loads in flight at control flow {i.text}: {pend[0].text}')
                    need = 0
                    for r, (p, w) in lastw.items():
                        if w.kind == 'mfma':
                            need = max(need, (12 if w.passes == 8 else 8) - (pos - p))
                        elif w.kind in ('valu', 'trans'):
                            need = max(need, 5 - (pos - p))
                    if need > 0 and i.tag != 'nopad':
                        while need > 0:
                            n = min(need, 16)
                            emit(Ins(f's_nop {n - 1}'))
                            need -= n
                emit(i)
                continue
            touched = set(i.src) | set(i.dst)
            vm = None
            idx = [n for n, o in enumerate(vmq) if touched & set(o.dst)]
            if idx:
                vm = after(max(idx))
            lg = None
            idx = [n for n, o in enumerate(lgq) if touched & set(o.dst)]
            if idx:
                if any(o.kind == 'smem' for o in lgq):
                    lg = 0
                else:
                    lg = len(lgq) - 1 - max(idx)
            if vm is not None or lg is not None:
                emit_wait(vm, lg)
            need = 0

            def req(p, n):
                nonlocal need
                need = max(need, n - (pos - p))
            isvalu = i.kind in ('valu', 'trans')
            ismem = i.kind in ('vld', 'vst', 'dma', 'ldsr', 'ldsw')
            for r in set(i.src):
                if r not in lastw:
                    continue
                p, w = lastw[r]
                if w.kind == 'mfma':
                    big = 12 if w.passes == 8 else 8
                    if i.kind == 'mfma':
                        if r in i.srcab:
                            req(p, big)
                        elif r in i.srcc:
                            if i.srcc == w.dst and i.passes == w.passes and i.mn == w.mn:
                                pass
                            else:
                                req(p, 10 if w.passes == 8 else 6)
                    else:
                        req(p, big)
                elif w.kind in ('valu', 'trans'):
                    if r[0] in ('v', 'a'):
                        if i.kind == 'mfma':
                            req(p, 2)
                        if isvalu and w.kind == 'trans' and i.kind != 'trans':
                            req(p, 1)
                        if w.kind == 'trans' and not isvalu:
                            req(p, 1)
                        if i.mn.startswith('v_readfirstlane') or i.mn.startswith('v_readlane'):
                            req(p, 1)
                        if i.mn.startswith('v_permlane') or 'dpp' in i.text or 'row_' in i.text or 'quad_perm' in i.text:
                            req(p, 2)
                        if 'sdwa' in w.mn or 'op_sel' in w.text and 'pk' not in w.mn:
                            req(p, 1)
                    else:
                        if ismem:
                            req(p, 5)
                        if isvalu or i.kind == 'mfma':
                            req(p, 4 if (r[0] == 'exec' or i.mn.startswith('v_readlane') or i.mn.startswith('v_writelane')) else 2)
                        if i.kind == 'salu':
                            req(p, 1)
                elif w.kind == 'salu':
                    if r[0] == 'm0' and i.kind == 'dma':
                        req(p, 1)
            for r in set(i.dst):
                if r in lastw:
                    p, w = lastw[r]
                    if w.kind == 'mfma' and not (i.kind == 'mfma'):
                        req(p, 12 if w.passes == 8 else 8)
                    if w.kind == 'mfma' and i.kind == 'mfma' and r not in i.srcc:
                        req(p, 10 if w.passes == 8 else 6) if w.passes > i.passes else None
                if r in mfma_srcc and (isvalu or i.kind in ('ldsr', 'vld')):
                    p, ps = mfma_srcc[r]
                    req(p, 7 if ps == 8 else 3)
                if r in store_data:
                    req(store_data[r], 2)
            while need > 0:
                n = min(need, 16)
                emit(Ins(f's_nop {n - 1}'))
                need -= n
            emit(i)
            for r in i.dst:
                lastw[r] = (pos, i)
            if i.kind == 'mfma':
                for r in i.srcc:
                    mfma_srcc[r] = (pos, i.passes)
            if i.kind == 'vst' and ('x4' in i.mn or 'x3' in i.mn):
                for r in i.src:
                    if r[0] in ('v', 'a'):
                        store_data[r] = pos
            if i.kind in ('vld', 'vst', 'dma'):
                vmq.append(i)
            if i.kind in ('ldsr', 'ldsw', 'smem'):
                lgq.append(i)
                if i.kind == 'smem' and not i.mn.endswith('dword'):
                    lgq.append(i)
        return out

    def text(self, **kw):
        lines = []
        for i in self.finalize(**kw):
            if i.kind == 'label':
                lines.append(i.text)
            else:
                lines.append('    ' + i.text)
        return '\n'.join(lines) + '\n'


def interleave(a, b):
    out = []
    na, nb = len(a), len(b)
    ia = ib = 0
    while ia < na or ib < nb:
        if ib >= nb or (ia < na and ia * nb <= ib * na):
            out.append(a[ia])
            ia += 1
        else:
            out.append(b[ib])
            ib += 1
    return out
```

```python
import struct, sys, os
from asmb import *

LOG2E = 1.4426950408889634


def f2u(x):
    return struct.unpack('<I', struct.pack('<f', x))[0]


def hx(x):
    return f'0x{x:08x}'


NAME = 'gated_mix__linear_kernel_hedgehog__grouped_kv_mqa__prompt'

WS_KF1 = 0x0
WS_KF2 = 0x10000
WS_VF = 0x20000
WS_G = 0x38000
WS_KVP = 0x40000
WS_OF = 0x200000
WS_WOF = 0x900000
WS_QX = 0xB00000
WS_PX = 0xD00000
WS_DBG = 0x800000
WS_CNT = 0x3C000
WS_SIZE = 0x10000000

SLOT = 20480
SLOTS = [65536, 65536 + SLOT, 65536 + 2 * SLOT, 0, SLOT, 2 * SLOT]
L_EX = 126976
L_WPHI = 152576
L_ZERO = L_WPHI + 3200
L_GA = 156672
L_PL = L_EX
L_PH = 0
L_QB2 = SLOTS[2]
L_OP = 20480
L_KVT = L_EX + 12288
L_RP = L_WPHI
OPART = 3328
LDS12 = 163840
OPT_PF = int(os.environ.get('OPT_PF', '0'))

DEBUG = os.environ.get('KDEBUG', '')


def srd(k, d, lo, hi, nbytes):
    k(f's_mov_b32 s{d}, s{lo}')
    k(f's_and_b32 s{d+1}, s{hi}, 0xffff')
    k(f's_mov_b32 s{d+2}, {hx(nbytes)}')
    k(f's_mov_b32 s{d+3}, 0x00020000')


def vr(b, n):
    return f'v[{b}:{b+n-1}]'


def ar(b, n):
    return f'a[{b}:{b+n-1}]'


def code_prefetch(k, start_label, end_label, vtmp, vdst, s0):
    k(f's_getpc_b64 s[{s0}:{s0+1}]')
    k(f'L_pc_{start_label}:', tag='nopad')
    k(f'v_and_b32 v{vtmp}, 15, v0')
    k(f'v_lshlrev_b32 v{vtmp}, 7, v{vtmp}')
    k(f's_lshl_b32 s64, s63, 11')
    k(f'v_add_u32 v{vtmp}, s64, v{vtmp}')
    k(f'v_min_u32 v{vtmp}, ({end_label}-L_pc_{start_label}-4), v{vtmp}')
    k('s_mov_b64 exec, 0xffff')
    k(f'global_load_dword v{vdst}, v{vtmp}, s[{s0}:{s0+1}]')
    k('s_mov_b64 exec, -1')


NSTAMP = [0]


P2STAMPS = ('start', 'p2start', 'T17', 'T30', 'T60', 'T88', 'T92b', 'p2main', 'end', 'issued', 'first', 'main')


def stamp(k, name=''):
    if not DEBUG:
        return
    if DEBUG == 'p2' and name not in P2STAMPS:
        return
    if DEBUG != 'p2' and name.startswith('T'):
        return
    i = NSTAMP[0]
    NSTAMP[0] += 1
    assert i < 9, name
    k(f's_memtime s[{84+2*i}:{85+2*i}]')
    k('s_waitcnt lgkmcnt(0)')


def stamp_dump(k, srdws, wv, kid):
    if not DEBUG:
        return
    n = NSTAMP[0]
    k('s_waitcnt vmcnt(0) lgkmcnt(0)')
    k('s_memrealtime s[64:65]')
    k('s_waitcnt lgkmcnt(0)')
    k('s_lshl_b32 s66, s2, 2')
    k(f's_add_u32 s66, s66, s{wv}')
    k('s_lshl_b32 s66, s66, 6')
    k(f's_add_u32 s66, s66, {WS_DBG + kid*0x10000}')
    k('v_mov_b32 v3, 0')
    k('s_mov_b64 exec, 1')
    for i in range(n):
        k(f'v_mov_b32 v2, s{84+2*i}')
        k(f'buffer_store_dword v2, v3, s[{srdws}:{srdws+3}], s66 offen offset:{4*i}')
    k(f'v_mov_b32 v2, s64')
    k(f'buffer_store_dword v2, v3, s[{srdws}:{srdws+3}], s66 offen offset:{4*15}')
    k(f'v_mov_b32 v2, s83')
    k(f'buffer_store_dword v2, v3, s[{srdws}:{srdws+3}], s66 offen offset:{4*14}')
    NSTAMP[0] = 0


def gen_k12():
    k = Asm()
    SX, SW, SQB, SWS, SDBG, SEX, SPHI, SDMA = 4, 8, 12, 16, 20, 24, 28, 32
    RB, CG, WV, TY = 36, 37, 38, 39
    XO = 40
    LANE = 1
    TRB0, TRB1 = 10, 11
    DK, DP, DV = 12, 17, 22
    XV = 27
    XR = 31
    ZERO, VG, VJ = 36, 37, 38
    ACC1, ACC2, ACCX = 40, 80, 120
    AF = 124
    PK = 164
    WF = 184
    GT = 236
    PFD = 240
    PHA, PHW, PLW, SC2, CST = 244, 245, 246, 248, 250
    EXA0, EXA1, EXS = 251, 252, 253

    k('k12_kernel:')
    k('s_cmp_ge_u32 s2, 256')
    k('s_cbranch_scc1 L12_end')
    k('s_load_dwordx4 s[40:43], s[0:1], 0')
    k('s_load_dwordx2 s[44:45], s[0:1], 16')
    k('s_load_dwordx4 s[48:51], s[0:1], 40')
    k('s_load_dwordx2 s[52:53], s[0:1], 56')
    k('s_load_dwordx2 s[54:55], s[0:1], 72')
    k('s_load_dwordx4 s[56:59], s[0:1], 88')
    k('s_and_b32 s62, s2, 7')
    k('s_lshr_b32 s63, s2, 3')
    code_prefetch(k, 'k12', 'L12_codeend', 2, 4, 60)
    k(f'v_and_b32 v{LANE}, 63, v0')
    k(f'v_lshrrev_b32 v5, 6, v0')
    k(f'v_readfirstlane_b32 s{WV}, v5')
    k('s_and_b32 s64, s62, 1')
    k('s_lshl_b32 s64, s64, 3')
    k('s_and_b32 s65, s63, 7')
    k(f's_add_u32 s{RB}, s64, s65')
    k('s_lshr_b32 s64, s62, 1')
    k('s_lshl_b32 s64, s64, 2')
    k('s_lshr_b32 s65, s63, 3')
    k('s_add_u32 s64, s64, s65')
    k(f's_and_b32 s{CG}, s64, 7')
    k(f's_lshr_b32 s{TY}, s64, 3')
    k(f'v_lshrrev_b32 v{VG}, 4, v{LANE}')
    k(f'v_and_b32 v{VJ}, 15, v{LANE}')
    k(f'v_mov_b32 v{ZERO}, 0')
    k(f's_lshl_b32 s64, s{RB}, 7')
    k(f's_lshl_b32 s65, s{WV}, 5')
    k('s_add_u32 s66, s64, s65')
    k('s_mul_i32 s67, s66, 1280')
    for i in range(4):
        k(f'v_add_u32 v5, {4*i}, v{VG}')
        k(f'v_xor_b32 v6, v5, v{VJ}')
        k(f'v_mul_u32_u24 v5, 1280, v5')
        k(f'v_lshl_add_u32 v{XV+i}, v6, 4, v5')
    for i in range(5):
        k(f'v_add_u32 v5, {64*i}, v{LANE}')
        k(f'v_mul_u32_u24 v6, 205, v5')
        k(f'v_lshrrev_b32 v6, 11, v6')
        k(f'v_mul_u32_u24 v7, 10, v6')
        k(f'v_sub_u32 v7, v5, v7')
        k(f'v_lshlrev_b32 v{DP+i}, 4, v7')
        k(f'v_and_b32 v7, 0x13, v6')
        k(f'v_and_b32 v8, 4, v6')
        k(f'v_lshl_add_u32 v7, v8, 1, v7')
        k(f'v_and_b32 v8, 8, v6')
        k(f'v_lshrrev_b32 v8, 1, v8')
        k(f'v_add_u32 v{DK+i}, v7, v8')
    k('s_waitcnt lgkmcnt(0)')
    if DEBUG:
        k('s_memrealtime s[82:83]')
        k('s_waitcnt lgkmcnt(0)')
        k('s_mov_b32 s83, s82')
    stamp(k, 'start')
    srd(k, SX, 40, 41, 2048 * 1280)
    srd(k, SW, 42, 43, 640 * 3840)
    srd(k, SQB, 48, 49, 640 * 1280)
    srd(k, SWS, 58, 59, WS_SIZE)
    srd(k, SDBG, 56, 57, 256)
    k(f's_mul_i32 s64, s{CG}, 3200')
    k('s_add_u32 s44, s44, s64')
    k('s_addc_u32 s45, s45, 0')
    srd(k, SPHI, 44, 45, 3200)
    srd(k, SEX, 54, 55, 1280)
    k(f's_and_b32 s64, s{RB}, 7')
    k('s_lshr_b32 s65, s63, 3')
    k('s_add_u32 s64, s64, s65')
    for _ in range(2):
        k('s_sub_u32 s65, s64, 5')
        k('s_cmp_ge_u32 s64, 5')
        k('s_cselect_b32 s64, s65, s64')
    for b in range(5):
        if b:
            k('s_add_u32 s64, s64, 1')
            k('s_cmp_ge_u32 s64, 5')
            k('s_cselect_b32 s64, 0, s64')
        k(f's_lshl_b32 s{XO+b}, s64, 8')
    k(f's_lshl_b32 s68, s{WV}, 14')
    k(f's_mul_i32 s69, s{CG}, 160')
    k(f's_mul_i32 s70, s{WV}, 5120')

    I = k.ins

    def xdma(c):
        out = [[I(f's_add_u32 s76, s67, s{XO+c}'), I('s_add_u32 s77, s76, 20480')]]
        for i in range(8):
            out.append(I(f's_add_u32 m0, s68, {(c%2)*8192 + i*1024}'))
            out.append(I(f'buffer_load_dwordx4 v{XV + i%4}, s[{SX}:{SX+3}], s{76 if i < 4 else 77} offen lds', tag=('x', c)))
        return out

    def xread(c):
        k.wait_tag(('x', c))
        for ks in range(4):
            for rt in range(2):
                k(f'ds_read_b128 {ar(80*rt + 16*c + 4*ks, 4)}, v{XR+ks} offset:{(c%2)*8192 + rt*4096}')

    k(f's_cmp_eq_u32 s{TY}, 0')
    for i in range(3):
        k(f's_cselect_b32 s{SDMA+i}, s{SQB+i}, s{SW+i}')
    k(f's_mov_b32 s{SDMA+3}, 0x00020000')
    k('s_movk_i32 s71, 3840')
    k('s_cselect_b32 s71, 1280, s71')
    k('s_cselect_b32 s72, 0, 2560')
    k('s_cselect_b32 s75, 0, 1280')
    k('s_add_u32 s72, s72, s69')
    k('s_add_u32 s75, s75, s69')
    k(f's_lshl_b32 s64, s{WV}, 5')
    k('s_mul_i32 s65, s64, s71')
    k('s_add_u32 s72, s72, s65')
    k('s_mul_i32 s65, s64, 3840')
    k('s_add_u32 s75, s75, s65')
    k('s_movk_i32 s64, 3840')
    for i in range(5):
        k(f'v_mad_u32_u24 v{DV+i}, v{DK+i}, s71, v{DP+i}')
        k(f'v_mad_u32_u24 v{DK+i}, v{DK+i}, s64, v{DP+i}')
    k('s_lshr_b32 s71, s71, 1')

    def wdma(p, b, slot):
        if p == 'P':
            out = [[I(f's_mul_i32 s73, s{XO+b}, s71'), I('s_add_u32 s73, s73, s72')]]
        else:
            out = [[I(f's_mul_i32 s73, s{XO+b}, 1920'), I('s_add_u32 s73, s73, s75')]]
        for i in range(5):
            out.append(I(f's_add_u32 m0, s70, {SLOTS[slot] + i*1024}'))
            if p == 'P':
                out.append(I(f'buffer_load_dwordx4 v{DV+i}, s[{SDMA}:{SDMA+3}], s73 offen lds', tag=('w', p, b)))
            else:
                out.append(I(f'buffer_load_dwordx4 v{DK+i}, s[{SW}:{SW+3}], s73 offen lds', tag=('w', p, b)))
        return out

    def exdma():
        out = [[I(f's_bitcmp1_b32 s{CG}, 1'), I('s_cselect_b32 s78, s52, s50'), I('s_cselect_b32 s79, s53, s51'),
                I(f's_mov_b32 s{SEX}, s78'), I(f's_and_b32 s{SEX+1}, s79, 0xffff'),
                I(f's_cmp_eq_u32 s{TY}, 0'), I(f's_cselect_b32 s{SEX+2}, 25600, 0'),
                I(f's_mul_i32 s78, s{WV}, 6400'), I(f'v_lshlrev_b32 v{DP}, 4, v{LANE}')]]
        for i in range(7):
            out.append([I(f's_add_u32 m0, s78, {L_EX + i*1024}'), I(f's_add_u32 s79, s78, {i*1024}')])
            ld = I(f'buffer_load_dwordx4 v{DP}, s[{SEX}:{SEX+3}], s79 offen lds', tag='exw')
            out.append([I('s_mov_b64 exec, 0xffff'), ld, I('s_mov_b64 exec, -1')] if i == 6 else ld)
        return out

    def flat(lst):
        out = []
        for x in lst:
            if isinstance(x, list):
                out += x
            else:
                out.append(x)
        return out

    k.extend(flat(xdma(0)))
    k.extend(flat(wdma('P', 0, 0)))
    k.extend(flat(xdma(1)))
    k('v_lshlrev_b32 v5, 1, v0')
    for i in range(3):
        k(f'buffer_load_ushort v{GT+i}, v5, s[{SEX}:{SEX+3}], 0 offen offset:{512*i}')
    k(f's_lshl_b32 s64, s{WV}, 10')
    k(f's_add_u32 m0, s64, {L_WPHI}')
    k(f'v_lshlrev_b32 v5, 4, v{LANE}')
    k(f'buffer_load_dwordx4 v5, s[{SPHI}:{SPHI+3}], s64 offen lds', tag='misc')
    if OPT_PF:
        k('s_and_b32 s64, s62, 1')
        k('s_lshl_b32 s64, s64, 5')
        k('s_add_u32 s64, s64, s63')
        k('s_mul_i32 s64, s64, 40960')
        k('v_lshlrev_b32 v5, 7, v0')
        k(f'buffer_load_dword v{PFD}, v5, s[{SX}:{SX+3}], s64 offen')
        k('v_mov_b32 v9, 0x80000000')
        k('v_cmp_gt_u32 vcc, 64, v0')
        k('v_add_u32 v5, 0x8000, v5')
        k('v_cndmask_b32 v5, v9, v5, vcc')
        k(f'buffer_load_dword v{PFD+3}, v5, s[{SX}:{SX+3}], s64 offen')
        k('v_mul_u32_u24 v6, 205, v0')
        k('v_lshrrev_b32 v6, 10, v6')
        k('v_mul_u32_u24 v7, 5, v6')
        k('v_sub_u32 v7, v0, v7')
        k('v_lshlrev_b32 v7, 7, v7')
        k('s_mul_i32 s64, s63, 20')
        k('v_add_u32 v6, s64, v6')
        k('s_lshl_b32 s64, s71, 1')
        k('v_mad_u32_u24 v8, v6, s64, v7')
        k('s_movk_i32 s64, 3840')
        k('v_mad_u32_u24 v7, v6, s64, v7')
        k('v_cmp_gt_u32 vcc, 100, v0')
        k('v_cndmask_b32 v8, v9, v8, vcc')
        k('v_cndmask_b32 v7, v9, v7, vcc')
        k(f's_lshr_b32 s64, s{CG}, 2')
        k('s_mul_i32 s64, s64, 640')
        k(f's_mul_i32 s65, s{TY}, 2560')
        k('s_add_u32 s65, s65, s64')
        k(f'buffer_load_dword v{PFD+1}, v8, s[{SDMA}:{SDMA+3}], s65 offen')
        k(f's_mul_i32 s65, s{TY}, 1280')
        k('s_add_u32 s65, s65, s64')
        k(f'buffer_load_dword v{PFD+2}, v7, s[{SW}:{SW+3}], s65 offen')
    k(f'v_xor_b32 v5, v{VG}, v{VJ}')
    k(f'v_lshlrev_b32 v6, 8, v{VJ}')
    k('v_add_u32 v6, s68, v6')
    for ks in range(4):
        k(f'v_xor_b32 v7, {4*ks}, v5')
        k(f'v_lshl_add_u32 v{XR+ks}, v7, 4, v6')
    k(f'v_and_b32 v5, 3, v{LANE}')
    k(f'v_lshrrev_b32 v6, 2, v{VJ}')
    k(f'v_lshrrev_b32 v7, 1, v{VG}')
    k(f'v_lshl_add_u32 v6, v7, 4, v6')
    k(f'v_and_b32 v7, 1, v{VG}')
    k(f'v_lshl_add_u32 v6, v7, 2, v6')
    k(f'v_mul_u32_u24 v6, 160, v6')
    k(f'v_mul_u32_u24 v7, 40, v5')
    k(f'v_add_u32 v{TRB1}, v6, v7')
    k(f'v_add_u32 v{TRB0}, 65536, v{TRB1}')
    k(f'v_lshrrev_b32 v6, 2, v{VJ}')
    k(f'v_mul_u32_u24 v6, 40, v6')
    k(f'v_mul_u32_u24 v7, 800, v{VG}')
    k(f'v_add3_u32 v6, v6, v7, v{ZERO}')
    k(f'v_add_u32 v6, {L_WPHI}, v6')
    k(f'v_mov_b32 v7, {L_ZERO}')
    k(f'v_cmp_eq_u32 vcc, v5, v{VG}')
    k(f'v_cndmask_b32 v{PHA}, v7, v6, vcc')
    k(f's_lshl_b32 s64, s{WV}, 5')
    k(f'v_add_u32 v5, s64, v{VJ}')
    k(f'v_mul_u32_u24 v6, 80, v5')
    k(f'v_mul_u32_u24 v7, 10240, v{VG}')
    k(f'v_add_u32 v{PHW}, v6, v7')
    k(f'v_mul_u32_u24 v6, 48, v5')
    k(f'v_mul_u32_u24 v7, 6144, v{VG}')
    k(f'v_add_u32 v{PLW}, v6, v7')
    k(f's_cmp_eq_u32 s{TY}, 0')
    k(f's_cselect_b32 s64, {hx(f2u(LOG2E / 20 ** 0.5))}, 1.0')
    k(f'v_mov_b32 v{SC2}, s64')
    k('s_cselect_b32 s64, 0, 0x3f80')
    k(f'v_mov_b32 v{CST}, s64')

    def tr_reads(slot, ks, buf):
        out = []
        base = TRB0 if slot < 3 else TRB1
        so = (slot % 3) * SLOT
        for t in range(5):
            for cr in range(2):
                out.append(f'ds_read_b64_tr_b16 {vr(AF + 20*buf + 4*t + 2*cr, 2)}, v{base} offset:{so + ks*5120 + cr*1280 + 8*t}')
        return out

    def gemm_seg(phases):
        steps = [(pi, ks) for pi in range(len(phases)) for ks in range(4)]

        def boundary(pi):
            kind, b, slot, pre, items = phases[pi]
            if pre:
                pre()
            k('s_waitcnt lgkmcnt(0)')
            k.wait_tag(('w', kind, b))
            k('s_barrier')
        boundary(0)
        k.extend(tr_reads(phases[0][2], 0, 0))
        pend = list(phases[0][4])
        left = 3
        for n, (pi, ks) in enumerate(steps):
            kind, b, slot, pre, items = phases[pi]
            nxt = []
            if n + 1 < len(steps):
                npi, nks = steps[n + 1]
                if nks == 0:
                    k.extend(flat(pend))
                    boundary(npi)
                    pend = list(phases[npi][4])
                    left = 4 if npi + 1 < len(phases) else 5
                nxt = tr_reads(phases[npi][2], nks, (n + 1) % 2)
            acc = ACC2 if kind == 'P' else ACC1
            mf = []
            for t in range(5):
                for rt in range(2):
                    d = vr(acc + 20 * rt + 4 * t, 4)
                    c = d if (b or ks) else '0'
                    mf.append(f'v_mfma_f32_16x16x32_bf16 {d}, {vr(AF + 20*(n%2) + 4*t, 4)}, {ar(80*rt + 16*b + 4*ks, 4)}, {c}')
            take = -(-len(pend) // left) if left > 0 else len(pend)
            cur, pend = pend[:take], pend[take:]
            left -= 1
            k.extend(flat(interleave(interleave(mf, nxt), cur)))
        k.extend(flat(pend))

    def ga_build():
        xread(3)
        k(f'v_lshlrev_b32 v5, 3, v0')
        for i in range(3):
            if i == 2:
                k('v_cmp_gt_u32 vcc, 128, v0')
                k('s_and_saveexec_b64 s[64:65], vcc')
            k(f'v_add_u32 v6, {L_GA + 2048*i}, v5')
            k(f'ds_write_b16 v6, v{GT+i}')
        k('s_mov_b64 exec, -1')

    zc = [[I(f's_add_u32 s78, s{WV}, s{TY}'), I(f's_add_u32 s79, s78, s{RB}'), I(f's_lshl_b32 s80, s{CG}, 7'),
           I(f's_add_u32 s80, s80, {WS_CNT}'), I('s_cmp_eq_u32 s79, 0'), I('s_cselect_b32 s80, s80, 0x80000000'),
           I(f's_add_u32 s79, s78, s{CG}'), I(f's_lshl_b32 s81, s{RB}, 7'), I(f's_add_u32 s81, s81, {WS_CNT + 0x1000}'),
           I('s_cmp_eq_u32 s79, 0'), I('s_cselect_b32 s81, s81, 0x80000000'),
           I(f'v_mov_b32 v{DP+3}, s80'), I(f'v_mov_b32 v{DP+4}, s81'),
           I('s_mov_b64 exec, 1'),
           I(f'buffer_store_dword v{ZERO}, v{DP+3}, s[{SWS}:{SWS+3}], 0 offen sc1'),
           I(f'buffer_store_dword v{ZERO}, v{DP+4}, s[{SWS}:{SWS+3}], 0 offen sc1'),
           I('s_mov_b64 exec, -1')]]
    gemm_seg([
        ('P', 0, 0, lambda: xread(0), wdma('P', 1, 1) + xdma(2)),
        ('P', 1, 1, lambda: xread(1), wdma('P', 2, 2) + xdma(3) + zc),
        ('P', 2, 2, lambda: xread(2), wdma('P', 3, 0) + xdma(4)),
        ('P', 3, 0, ga_build, wdma('P', 4, 1) + exdma()),
        ('P', 4, 1, lambda: xread(4), wdma('F', 0, 2) + wdma('F', 1, 0)),
    ])
    stamp(k, 'pass0')

    pe = []
    for rt in range(2):
        P = ACC2 + 20 * rt
        Q = PK + 12 * rt
        for i in range(0, 20, 2):
            pe.append(f'v_pk_mul_f32 {vr(P+i,2)}, {vr(P+i,2)}, {vr(SC2,2)} op_sel_hi:[1,0]')
        for i in range(10):
            pe.append(f'v_cvt_pk_bf16_f32 v{Q+i}, v{P+2*i}, v{P+2*i+1}')
        pe.append(f'v_mov_b32 v{Q+10}, v{CST}')
        pe.append(f'v_mov_b32 v{Q+11}, 0')
    k.extend(flat(interleave(pe, wdma('F', 2, 3))))

    k.push()
    k(f's_cmp_lg_u32 s{TY}, 0')
    k('s_cbranch_scc1 L12_noex', tag='keep')
    k(f's_lshl_b32 s64, s{RB}, 3')
    k(f's_add_u32 s64, s64, s{CG}')
    k('s_mul_i32 s64, s64, 12288')
    k(f's_add_u32 s64, s64, {WS_QX - 12288}')
    k('s_mov_b32 exec_lo, 0')
    for rt in range(2):
        for i in range(3):
            k(f'buffer_store_dwordx4 {vr(PK + 12*rt + 4*i, 4)}, v{PLW}, s[{SWS}:{SWS+3}], s64 offen offset:{rt*768 + 16*i} sc1')
    k('s_mov_b64 exec, -1')
    k.wait_tag('exw')
    k('s_barrier')
    k(f'v_and_b32 v5, 3, v{LANE}')
    k(f'v_lshrrev_b32 v6, 2, v{VJ}')
    k(f'v_lshl_add_u32 v6, v{VG}, 3, v6')
    k(f'v_mul_u32_u24 v7, 40, v6')
    k(f'v_lshl_add_u32 v7, v5, 3, v7')
    k(f's_and_b32 s64, s{CG}, 1')
    k('s_lshl_b32 s64, s64, 5')
    k(f's_add_u32 s64, s64, {L_EX}')
    k(f'v_add_u32 v{EXA0}, s64, v7')
    k(f'v_mov_b32 v{EXA1}, 160')
    k(f'v_mov_b32 v{EXS}, 20')
    k(f's_and_b32 s64, s{CG}, 3')
    k('s_cmp_eq_u32 s64, 1')
    k('s_cselect_b32 s64, 1, 7')
    k(f'v_cmp_eq_u32 vcc, s64, v5')
    k(f'v_lshlrev_b32 v7, 3, v6')
    k(f'v_add_u32 v7, {L_GA}, v7')
    k(f'v_cndmask_b32 v{EXA0}, v{EXA0}, v7, vcc')
    k(f'v_cndmask_b32 v{EXA1}, v{EXA1}, 32, vcc')
    k(f'v_cndmask_b32 v{EXS}, v{EXS}, 4, vcc')
    k(f'v_add_u32 v{EXA1}, v{EXA1}, v{EXA0}')
    k(f's_cmp_ge_u32 s{CG}, 4')
    k('s_cbranch_scc1 L12_ex_rt1', tag='keep')
    for rt in range(2):
        if rt == 1:
            k('L12_ex_rt1:', tag='keep')
        def rd(s):
            return [f's_add_u32 s64, s{XO + s//4}, {64*(s%4)}',
                    f'v_mad_u32_u24 v5, v{EXS}, s64, v{EXA0}',
                    f'v_mad_u32_u24 v6, v{EXS}, s64, v{EXA1}',
                    f'ds_read_b64_tr_b16 {vr(AF + 4*(s%8), 2)}, v5',
                    f'ds_read_b64_tr_b16 {vr(AF + 4*(s%8) + 2, 2)}, v6']
        for s in range(4):
            k.extend(rd(s))
        for s in range(20):
            if s + 4 < 20:
                k.extend(rd(s + 4))
            c = vr(ACCX, 4) if s else '0'
            k(f'v_mfma_f32_16x16x32_bf16 {vr(ACCX,4)}, {vr(AF + 4*(s%8), 4)}, {ar(80*rt + 4*s, 4)}, {c}')
        if rt == 0:
            k('s_branch L12_ex_st', tag='keep')
    k('L12_ex_st:', tag='keep')
    k(f's_lshr_b32 s64, s{CG}, 2')
    k('s_lshl_b32 s64, s64, 4')
    k('s_add_u32 s64, s64, s66')
    k(f'v_add_u32 v5, s64, v{VJ}')
    k(f's_bitcmp1_b32 s{CG}, 1')
    k('s_cbranch_scc1 L12_ex_v', tag='keep')
    k(f'v_cvt_pk_bf16_f32 v8, v{ACCX}, v{ACCX+1}')
    k(f'v_cvt_pk_bf16_f32 v9, v{ACCX+2}, v{ACCX+3}')
    k(f's_bitcmp1_b32 s{CG}, 0')
    k('s_cbranch_scc1 L12_ex_k1', tag='keep')
    k('v_lshrrev_b32 v6, 5, v5')
    k('v_lshlrev_b32 v6, 10, v6')
    k('v_and_b32 v7, 31, v5')
    k('v_lshl_add_u32 v6, v7, 4, v6')
    k(f'v_lshrrev_b32 v7, 1, v{VG}')
    k('v_lshl_add_u32 v6, v7, 9, v6')
    k(f'v_and_b32 v7, 1, v{VG}')
    k('v_lshl_add_u32 v6, v7, 3, v6')
    k(f'buffer_store_dwordx2 v[8:9], v6, s[{SWS}:{SWS+3}], 0 offen sc1')
    k('s_branch L12_ex_done', tag='keep')
    k('L12_ex_k1:', tag='keep')
    k('v_lshrrev_b32 v6, 6, v5')
    k('v_lshlrev_b32 v6, 9, v6')
    k('v_and_b32 v7, 31, v5')
    k('v_lshl_add_u32 v6, v7, 4, v6')
    k('v_bfe_u32 v7, v5, 5, 1')
    k('v_lshl_add_u32 v6, v7, 3, v6')
    k(f'v_add_u32 v6, {WS_KF2}, v6')
    k('s_mov_b64 exec, 0xffff')
    k(f'buffer_store_dwordx2 v[8:9], v6, s[{SWS}:{SWS+3}], 0 offen sc1')
    k('s_mov_b64 exec, 0xffff0000')
    k(f'v_mul_f32 v7, {hx(f2u(-LOG2E))}, v{ACCX}')
    k('v_exp_f32 v7, v7')
    k('v_add_f32 v7, 1.0, v7')
    k('v_rcp_f32 v7, v7')
    k(f'v_lshlrev_b32 v6, 2, v5')
    k(f'v_add_u32 v6, {WS_G}, v6')
    k(f'buffer_store_dword v7, v6, s[{SWS}:{SWS+3}], 0 offen sc1')
    k('s_mov_b64 exec, -1')
    k('s_branch L12_ex_done', tag='keep')
    k('L12_ex_v:', tag='keep')
    k('v_lshrrev_b32 v6, 4, v5')
    k('v_mul_u32_u24 v6, 672, v6')
    k(f'v_bfe_u32 v7, v{VJ}, 2, 1')
    k('v_mul_u32_u24 v7, 336, v7')
    k('v_add_u32 v6, v6, v7')
    k(f'v_lshrrev_b32 v7, 3, v{VJ}')
    k('v_lshl_add_u32 v6, v7, 3, v6')
    k(f'v_and_b32 v7, 3, v{VJ}')
    k('v_lshl_add_u32 v6, v7, 1, v6')
    k(f'v_add_u32 v6, {WS_VF}, v6')
    k(f's_bitcmp1_b32 s{CG}, 0')
    k('s_mov_b32 s64, 0x04100800')
    k('s_cselect_b32 s64, 0x0000140c, s64')
    k(f'v_lshlrev_b32 v7, 3, v{VG}')
    k('v_lshrrev_b32 v7, v7, s64')
    k('v_and_b32 v7, 0xff, v7')
    k('v_lshl_add_u32 v6, v7, 4, v6')
    k('s_cselect_b32 s64, 1, 7')
    k(f'v_cmp_eq_u32 vcc, s64, v{VG}')
    k(f'v_cndmask_b32 v{ACCX}, v{ACCX}, 1.0, vcc')
    k(f'v_cvt_pk_bf16_f32 v8, v{ACCX}, v{ACCX+1}')
    k(f'v_cvt_pk_bf16_f32 v9, v{ACCX+2}, v{ACCX+3}')
    k('s_mov_b32 s64, -1')
    k('s_cselect_b32 s65, 0, -1')
    k('s_mov_b64 exec, s[64:65]')
    k(f'buffer_store_short v8, v6, s[{SWS}:{SWS+3}], 0 offen sc1')
    k('s_cselect_b32 s64, 0xffff, -1')
    k('s_mov_b64 exec, s[64:65]')
    k(f'buffer_store_short_d16_hi v8, v6, s[{SWS}:{SWS+3}], 0 offen offset:16 sc1')
    k(f'buffer_store_short v9, v6, s[{SWS}:{SWS+3}], 0 offen offset:32 sc1')
    k(f'buffer_store_short_d16_hi v9, v6, s[{SWS}:{SWS+3}], 0 offen offset:48 sc1')
    k('s_mov_b64 exec, -1')
    k('L12_ex_done:', tag='keep')
    k('L12_noex:', tag='keep')
    k.pop()
    k.mark('pub1')
    stamp(k, 'extras')

    POLLV = 254

    def prepoll():
        k(f'buffer_load_dword v{POLLV}, v{ZERO}, s[{SDBG}:{SDBG+3}], 0 offen offset:128 sc1')
    plw = [I(f'v_add_u32 v{DP+1}, {L_PL}, v{PLW}')]
    for rt in range(2):
        for i in range(3):
            plw.append(I(f'ds_write_b128 v{DP+1}, {vr(PK + 12*rt + 4*i, 4)} offset:{rt*768 + 16*i}'))
    sig1 = [[I(f's_add_u32 s78, s{WV}, s{TY}'), I(f's_and_b32 s79, s{RB}, 3'), I('s_lshl_b32 s79, s79, 5'),
             I('s_cmp_eq_u32 s78, 0'), I('s_cselect_b32 s79, s79, 0x1000'), I(f'v_mov_b32 v{DP+2}, 1'), I(f'v_mov_b32 v{DP+4}, s79'),
             I('s_mov_b64 exec, 1'), I(f'buffer_atomic_add v{DP+2}, v{DP+4}, s[{SDBG}:{SDBG+3}], 0 offen sc0'), I('s_mov_b64 exec, -1')]]
    sig1b = [[I(f'v_readfirstlane_b32 s78, v{DP+2}'), I(f'v_mov_b32 v{DP+3}, 1'), I('s_cmp_eq_u32 s78, 31'),
              I('s_cselect_b32 s79, 0, 0x1000'), I(f'v_mov_b32 v{DP+4}, s79'),
              I('s_mov_b64 exec, 1'), I(f'buffer_atomic_add v{DP+3}, v{DP+4}, s[{SDBG}:{SDBG+3}], 0 offen offset:128'), I('s_mov_b64 exec, -1')]]
    gemm_seg([
        ('F', 0, 2, lambda: k.wait_tag('misc'), plw + wdma('F', 3, 4) + wdma('F', 4, 5)),
        ('F', 1, 0, lambda: k.wait_tag('pub1'), sig1),
        ('F', 2, 3, None, []),
        ('F', 3, 4, None, sig1b),
        ('F', 4, 5, None, []),
    ])
    prepoll()
    stamp(k, 'pass1')
    for rt in range(2):
        for i in range(10):
            k(f'v_cvt_pk_bf16_f32 v{PK + 10*rt + i}, v{ACC1 + 20*rt + 2*i}, v{ACC1 + 20*rt + 2*i + 1}')
    for t in range(5):
        for u in range(5):
            k(f'ds_read_b64_tr_b16 {vr(WF + 10*t + 2*u, 2)}, v{PHA} offset:{u*160 + 8*t}')
    k('s_waitcnt lgkmcnt(0)')
    k('s_mov_b32 s75, 0')
    k('s_waitcnt vmcnt(0)')
    k('L12_poll1:')
    k(f'v_readfirstlane_b32 s64, v{POLLV}')
    k('s_cmp_ge_u32 s64, 4')
    k('s_cbranch_scc1 L12_poll1_ok')
    k('s_sleep 2')
    k(f'buffer_load_dword v{POLLV}, v{ZERO}, s[{SDBG}:{SDBG+3}], 0 offen offset:128 sc1')
    k('s_waitcnt vmcnt(0)')
    k('s_add_u32 s75, s75, 1')
    k('s_cmp_lt_u32 s75, 0x100000')
    k('s_cbranch_scc1 L12_poll1')
    k('L12_poll1_ok:')
    stamp(k, 'polled')
    k.push()
    k(f's_cmp_eq_u32 s{TY}, 0')
    k('s_cbranch_scc1 L12_noqx')
    k(f's_lshl_b32 s64, s{RB}, 3')
    k(f's_add_u32 s64, s64, s{CG}')
    k('s_mul_i32 s64, s64, 12288')
    k(f's_mul_i32 s65, s{WV}, 3072')
    k('s_add_u32 s64, s64, s65')
    k(f's_add_u32 s64, s64, {WS_QX}')
    k(f'v_lshlrev_b32 v5, 4, v{LANE}')
    k(f's_add_u32 m0, s65, {L_QB2}')
    for i in range(3):
        k(f'buffer_load_dwordx4 v5, s[{SWS}:{SWS+3}], s64 offen offset:{1024*i} sc1 lds')
    k('L12_noqx:')
    k.pop()
    KF1A, KF2A, VFA = 0, 64, 96
    HH = 9
    k(f'v_lshrrev_b32 v{HH}, 5, v{LANE}')
    KVA = 27
    k(f'v_lshlrev_b32 v{KVA}, 4, v{LANE}')
    k(f'v_and_b32 v8, 31, v{LANE}')
    k(f'v_lshlrev_b32 v6, 4, v8')
    k(f'v_add_u32 v{KVA+1}, {WS_KF2}, v6')
    k('v_cmp_gt_u32 vcc, 20, v8')
    k(f'v_cndmask_b32 v7, v{ZERO}, v8, vcc')
    k('v_and_b32 v2, 27, v8')
    k('v_cmp_eq_u32 vcc, 24, v2')
    k('v_cndmask_b32 v7, v7, 20, vcc')
    k('v_lshlrev_b32 v7, 4, v7')
    k(f'v_mul_u32_u24 v2, 336, v{HH}')
    k(f'v_add3_u32 v7, v7, v2, v{ZERO}')
    k(f'v_add_u32 v{KVA+2}, {WS_VF}, v7')
    k(f's_mov_b32 s64, {hx(f2u(LOG2E))}')
    k(f's_lshl_b32 s74, s{RB}, 3')
    k(f's_add_u32 s74, s74, s{CG}')
    k('s_mul_i32 s74, s74, 20480')
    k(f's_add_u32 s74, s74, {WS_PX - 20480}')
    k(f's_cmp_eq_u32 s{TY}, 0')
    k('s_cselect_b32 s65, 2, 8')
    k(f'v_cmp_le_u32 vcc, s65, v{VG}')
    k('v_mov_b32 v12, 0x80000000')
    k(f'v_cndmask_b32 v12, v12, v{PHW}, vcc')
    kvl = [[I('s_and_b32 s80, s63, 7'), I(f's_lshl_b32 s81, s{WV}, 3')]]
    for tp in range(8):
        g = []
        if tp:
            g += [I('s_add_u32 s80, s80, 1'), I('s_and_b32 s80, s80, 7')]
        g += [I('s_add_u32 s79, s80, s81'), I('s_lshl_b32 s76, s79, 11'), I('s_lshl_b32 s77, s79, 9'), I(f's_mul_i32 s78, s79, {4*672}')]
        kvl.append(g)
        kvl.append(I(f'buffer_load_dwordx4 {ar(KF1A + 8*tp, 4)}, v{KVA}, s[{SWS}:{SWS+3}], s76 offen sc1'))
        kvl.append(I(f'buffer_load_dwordx4 {ar(KF2A + 4*tp, 4)}, v{KVA+1}, s[{SWS}:{SWS+3}], s77 offen sc1'))
        for e in range(2):
            kvl.append(I(f'buffer_load_dwordx4 {ar(VFA + 16*tp + 4*e, 4)}, v{KVA+2}, s[{SWS}:{SWS+3}], s78 offen offset:{e*672} sc1'))
        kvl.append(I(f'buffer_load_dwordx4 {ar(KF1A + 8*tp + 4, 4)}, v{KVA}, s[{SWS}:{SWS+3}], s76 offen offset:1024 sc1'))
        for e in range(2, 4):
            kvl.append(I(f'buffer_load_dwordx4 {ar(VFA + 16*tp + 4*e, 4)}, v{KVA+2}, s[{SWS}:{SWS+3}], s78 offen offset:{e*672} sc1'))
    kmain = k
    k = Asm()
    for t in range(5):
        for rt in range(2):
            d = vr(ACC1 + 20 * rt + 4 * t, 4)
            k(f'v_mfma_f32_16x16x32_bf16 {d}, {vr(WF + 10*t, 4)}, {vr(PK + 10*rt, 4)}, 0')
    for t in range(5):
        for rt in range(2):
            d = vr(ACC1 + 20 * rt + 4 * t, 4)
            k(f'v_mfma_f32_16x16x32_bf16 {d}, {vr(WF + 10*t + 4, 4)}, {vr(PK + 10*rt + 4, 4)}, {d}')
    for t in range(5):
        for rt in range(2):
            d = vr(ACC1 + 20 * rt + 4 * t, 4)
            k(f'v_mfma_f32_16x16x16_bf16 {d}, {vr(WF + 10*t + 8, 2)}, {vr(PK + 10*rt + 8, 2)}, {d}')
    for rt in range(2):
        P = ACC1 + 20 * rt
        EP, EM = WF, WF + 20
        MX, MN, SP, SM = 2, 4, 6, 14
        PO = PK if rt == 0 else ACC2
        k(f'v_max3_f32 v{MX}, v{P}, v{P+1}, v{P+2}')
        k(f'v_min3_f32 v{MN}, v{P}, v{P+1}, v{P+2}')
        for i in range(3, 19, 2):
            k(f'v_max3_f32 v{MX}, v{MX}, v{P+i}, v{P+i+1}')
            k(f'v_min3_f32 v{MN}, v{MN}, v{P+i}, v{P+i+1}')
        k(f'v_max_f32 v{MX}, v{MX}, v{P+19}')
        k(f'v_min_f32 v{MN}, v{MN}, v{P+19}')
        k(f'v_mul_f32 v{MX}, {hx(f2u(-LOG2E))}, v{MX}')
        k(f'v_mul_f32 v{MN}, s64, v{MN}')
        for i in range(0, 20, 2):
            k(f'v_pk_fma_f32 {vr(EP+i,2)}, {vr(P+i,2)}, s[64:65], {vr(MX,2)} op_sel_hi:[1,0,0]')
            k(f'v_pk_fma_f32 {vr(EM+i,2)}, {vr(P+i,2)}, s[64:65], {vr(MN,2)} op_sel_hi:[1,0,0] neg_lo:[1,0,0] neg_hi:[1,0,0]')
        for i in range(40):
            k(f'v_exp_f32 v{EP+i}, v{EP+i}')
        k(f'v_pk_add_f32 {vr(SP,2)}, {vr(EP,2)}, {vr(EP+2,2)}')
        k(f'v_pk_add_f32 {vr(SM,2)}, {vr(EM,2)}, {vr(EM+2,2)}')
        for i in range(4, 20, 2):
            k(f'v_pk_add_f32 {vr(SP,2)}, {vr(SP,2)}, {vr(EP+i,2)}')
            k(f'v_pk_add_f32 {vr(SM,2)}, {vr(SM,2)}, {vr(EM+i,2)}')
        k(f'v_add_f32 v{SP}, v{SP}, v{SP+1}')
        k(f'v_add_f32 v{SM}, v{SM}, v{SM+1}')
        k(f'v_rcp_f32 v{SP}, v{SP}')
        k(f'v_rcp_f32 v{SM}, v{SM}')
        for i in range(0, 20, 2):
            k(f'v_pk_mul_f32 {vr(EP+i,2)}, {vr(EP+i,2)}, {vr(SP,2)} op_sel_hi:[1,0]')
            k(f'v_pk_mul_f32 {vr(EM+i,2)}, {vr(EM+i,2)}, {vr(SM,2)} op_sel_hi:[1,0]')
        for i in range(20):
            k(f'v_cvt_pk_bf16_f32 v{PO+i}, v{EP+2*i}, v{EP+2*i+1}')
        for i in range(5):
            k(f'ds_write_b128 v{PHW}, {vr(PO+4*i,4)} offset:{L_PH + rt*1280 + 16*i}')
            k(f'buffer_store_dwordx4 {vr(PO+4*i,4)}, v12, s[{SWS}:{SWS+3}], s74 offen offset:{rt*1280 + 16*i} sc1', tag='pub2')
    epi = k.items
    k = kmain
    k.extend(flat(interleave(epi, kvl)))
    k('s_waitcnt lgkmcnt(0)')
    k('s_barrier')
    stamp(k, 'epi')

    k.push()
    k(f's_cmp_eq_u32 s{TY}, 0')
    k('s_cbranch_scc1 L12_nokv', tag='keep')
    k(f'v_and_b32 v5, 3, v{LANE}')
    k(f'v_lshrrev_b32 v6, 2, v{VJ}')
    k(f'v_lshl_add_u32 v6, v{VG}, 3, v6')
    k(f'v_mul_u32_u24 v7, 80, v6')
    k(f'v_lshl_add_u32 v7, v5, 3, v7')
    k(f's_mul_i32 s64, s{WV}, 10240')
    k(f's_add_u32 s64, s64, {L_PH}')
    k('v_add_u32 v7, s64, v7')
    k(f'v_mul_u32_u24 v8, 48, v6')
    k(f'v_lshl_add_u32 v8, v5, 3, v8')
    k(f's_mul_i32 s64, s{WV}, 6144')
    k(f's_add_u32 s64, s64, {L_PL}')
    k('v_add_u32 v8, s64, v8')
    KA, KB, KD = 104, 152, 184
    for s in range(4):
        for tf in range(3):
            for cr in range(2):
                k(f'ds_read_b64_tr_b16 {vr(KA + 12*s + 4*tf + 2*cr, 2)}, v7 offset:{s*2560 + cr*320 + tf*32}')
        for dt in range(2):
            for cr in range(2):
                k(f'ds_read_b64_tr_b16 {vr(KB + 8*s + 4*dt + 2*cr, 2)}, v8 offset:{s*1536 + cr*192 + dt*32}')
    for s in range(4):
        for dt in range(2):
            for tf in range(3):
                d = vr(KD + 12 * dt + 4 * tf, 4)
                k(f'v_mfma_f32_16x16x32_bf16 {d}, {vr(KA + 12*s + 4*tf, 4)}, {vr(KB + 8*s + 4*dt, 4)}, {d if s else 0}')
    k(f's_lshl_b32 s64, s{CG}, 2')
    k(f's_add_u32 s64, s64, s{WV}')
    k('s_lshl_b32 s64, s64, 4')
    k(f's_add_u32 s64, s64, s{RB}')
    k('s_mul_i32 s64, s64, 3360')
    k(f's_add_u32 s64, s64, {WS_KVP}')
    for dt in range(2):
        k(f'v_lshrrev_b32 v6, 2, v{VJ}')
        k('v_lshlrev_b32 v6, 3, v6')
        k(f's_mov_b32 s65, {"0x04100800" if dt == 0 else "0x0000140c"}')
        k('v_lshrrev_b32 v6, v6, s65')
        k('v_and_b32 v6, 0xff, v6')
        k(f'v_and_b32 v7, 3, v{VJ}')
        k('v_add_u32 v6, v6, v7')
        k('v_mul_u32_u24 v6, 160, v6')
        k(f'v_lshl_add_u32 v6, v{VG}, 4, v6')
        k('v_mov_b32 v7, 0x80000000')
        if dt == 1:
            k(f'v_cmp_lt_u32 vcc, 4, v{VJ}')
            k('v_cndmask_b32 v6, v6, v7, vcc')
        k(f'v_cmp_lt_u32 vcc, 1, v{VG}')
        k('v_cndmask_b32 v7, v6, v7, vcc')
        for tf in range(3):
            k(f'buffer_store_dwordx4 {vr(KD + 12*dt + 4*tf, 4)}, v{6 if tf < 2 else 7}, s[{SWS}:{SWS+3}], s64 offen offset:{64*tf} sc1')
    k('L12_nokv:', tag='keep')
    k.pop()
    S0, PB, OB, QF = 40, 72, 88, 208
    k('s_waitcnt vmcnt(40)')
    k('s_barrier')
    k(f'v_and_b32 v5, 31, v{LANE}')
    k('v_mul_u32_u24 v6, 48, v5')
    k(f's_cmp_eq_u32 s{TY}, 0')
    k(f's_mov_b32 s64, {L_QB2}')
    k(f's_cselect_b32 s64, {L_PL}, s64')
    k('v_add_u32 v6, s64, v6')
    k(f'v_lshl_add_u32 v7, v{HH}, 3, v6')
    k(f'v_lshl_add_u32 v6, v{HH}, 4, v6')
    for n in range(8):
        off = (n // 4) * 6144 + (n % 4) * 1536
        k(f'ds_read_b128 {vr(QF + 6*n, 4)}, v6 offset:{off}')
        k(f'ds_read_b64 {vr(QF + 6*n + 4, 2)}, v7 offset:{off + 32}')
    OWA, OWB = 10, 11
    k(f's_mul_i32 s64, s{WV}, {OPART}')
    k(f's_add_u32 s64, s64, {L_OP}')
    k(f'v_lshlrev_b32 v{OWA}, 4, v{LANE}')
    k(f'v_add_u32 v{OWA}, s64, v{OWA}')
    k(f'v_lshlrev_b32 v{OWB}, 2, v{LANE}')
    k(f'v_add_u32 v{OWB}, s64, v{OWB}')
    k(f'v_add_u32 v12, {4*4*OPART}, v{OWA}')
    k(f'v_add_u32 v13, {4*4*OPART}, v{OWB}')
    k('s_load_dwordx2 s[40:41], s[0:1], 24')
    k('s_load_dwordx2 s[42:43], s[0:1], 64')
    k('s_waitcnt lgkmcnt(0)')
    stamp(k, 'p2start')

    def qk(T):
        n, t = divmod(T, 16)
        S = S0 + 16 * (T % 2)
        return [f'v_mfma_f32_32x32x16_bf16 {vr(S,16)}, {ar(KF1A + 4*t, 4)}, {vr(QF + 6*n, 4)}, 0',
                f'v_mfma_f32_32x32x8_bf16 {vr(S,16)}, {ar(KF2A + 2*t, 2)}, {vr(QF + 6*n + 4, 2)}, {vr(S,16)}']

    def pv(T):
        n, t = divmod(T, 16)
        O = OB + 16 * (n % 2)
        P = PB + 8 * (T % 2)
        return [f'v_mfma_f32_32x32x16_bf16 {vr(O,16)}, {ar(VFA + 8*t, 4)}, {vr(P, 4)}, {vr(O,16) if t else 0}',
                f'v_mfma_f32_32x32x16_bf16 {vr(O,16)}, {ar(VFA + 8*t + 4, 4)}, {vr(P + 4, 4)}, {vr(O,16)}']

    def owrite(n):
        O = OB + 16 * (n % 2)
        a, b = (OWA, OWB) if n < 4 else (12, 13)
        off = (n % 4) * 4 * OPART
        return [f'ds_write_b128 v{a}, {vr(O + 4*i, 4)} offset:{off + 1024*i}' for i in range(3)] + \
               [f'ds_write_b32 v{b}, v{O+12} offset:{off + 3072}']

    def tile_seq(T, NT=128):
        S = S0 + 16 * (T % 2)
        P = PB + 8 * (T % 2)
        ex = [f'v_exp_f32 v{S+i}, v{S+i}' for i in range(16)]
        cv = [f'v_cvt_pk_bf16_f32 v{P+i}, v{S+2*i}, v{S+2*i+1}' for i in range(8)]
        q = qk(T + 1) if T + 1 < NT else []
        p = pv(T - 1) if T > 0 else []
        seq = q[0:1] + ex[0:4] + cv[0:1] + p[0:1] + ex[4:8] + cv[1:3] + q[1:2] + ex[8:12] + cv[3:5] + p[1:2] + ex[12:16] + cv[5:8]
        if T % 16 == 1 and T > 16:
            ow = owrite(T // 16 - 1)
            seq = seq[:6] + ow[0:1] + seq[6:12] + ow[1:2] + seq[12:18] + ow[2:3] + seq[18:24] + ow[3:4] + seq[24:]
        return seq

    k.extend(qk(0))
    for T in range(0, 17):
        k.extend(tile_seq(T))
    stamp(k, 'T17')
    k('s_waitcnt vmcnt(0)')
    k('s_barrier')
    k('v_mov_b32 v5, 1')
    k(f's_lshl_b32 s79, s{CG}, 7')
    k(f's_add_u32 s79, s79, {WS_CNT}')
    k(f's_cmp_eq_u32 s{WV}, 0')
    k('s_cselect_b32 s64, s79, 0x80000000')
    k('v_mov_b32 v6, s64')
    k('s_mov_b64 exec, 1')
    k(f'buffer_atomic_add v5, v6, s[{SWS}:{SWS+3}], 0 offen')
    k('s_mov_b64 exec, -1')
    k.push()
    k('s_cmp_ge_u32 s2, 160')
    k('s_cbranch_scc1 L12_norp1', tag='keep')
    k('s_lshl_b32 s64, s2, 2')
    k(f's_add_u32 s64, s64, s{WV}')
    k('s_cmp_ge_u32 s64, 320')
    k('s_cselect_b32 s44, s42, s40')
    k('s_cselect_b32 s45, s43, s41')
    k('s_cselect_b32 s46, 1, 0')
    k('s_cselect_b32 s65, 320, 0')
    k('s_sub_u32 s64, s64, s65')
    srd(k, SX, 44, 45, 640 * 1280)
    k('s_and_b32 s47, s64, 7')
    k('s_lshr_b32 s48, s64, 3')
    k('s_mul_i32 s64, s48, 20480')
    k('s_mul_i32 s65, s47, 160')
    k('s_add_u32 s64, s64, s65')
    k(f's_mul_i32 s49, s{WV}, 2560')
    for i in range(3):
        k(f'v_add_u32 v5, {64*i}, v{LANE}')
        k(f'v_mul_u32_u24 v6, 205, v5')
        k(f'v_lshrrev_b32 v6, 11, v6')
        k(f'v_mul_u32_u24 v7, 10, v6')
        k(f'v_sub_u32 v7, v5, v7')
        k(f'v_mul_u32_u24 v6, 1280, v6')
        k(f'v_lshl_add_u32 v6, v7, 4, v6')
        if i == 2:
            k('s_mov_b64 exec, 0xffffffff')
        k(f's_add_u32 m0, s49, {L_RP + i*1024}')
        k(f'buffer_load_dwordx4 v6, s[{SX}:{SX+3}], s64 offen lds')
    k('s_mov_b64 exec, -1')
    k('L12_norp1:', tag='keep')
    k.pop()
    for T in range(17, 30):
        k.extend(tile_seq(T))
    k.push()
    k('s_cmp_ge_u32 s2, 160')
    k('s_cbranch_scc1 L12_norp2', tag='keep')
    k('s_waitcnt vmcnt(0)')
    k(f'v_and_b32 v5, 3, v{LANE}')
    k(f'v_lshrrev_b32 v6, 2, v{LANE}')
    k('v_mul_u32_u24 v6, 160, v6')
    k('v_mul_u32_u24 v5, 40, v5')
    k('v_add3_u32 v6, v6, v5, s49')
    k(f'v_add_u32 v6, {L_RP}, v6')
    RPV = 184
    for t in range(5):
        k(f'ds_read_b64_tr_b16 {vr(RPV + 2*t, 2)}, v6 offset:{8*t}')
    k('s_lshl_b32 s64, s48, 2')
    k(f'v_add_u32 v5, s64, v{VG}')
    k('v_mul_u32_u24 v6, 205, v5')
    k('v_lshrrev_b32 v6, 10, v6')
    k('v_mul_u32_u24 v7, 5, v6')
    k('v_sub_u32 v7, v5, v7')
    k('v_lshlrev_b32 v7, 2, v7')
    k('s_cmp_eq_u32 s46, 0')
    k('s_mov_b32 s64, 0x98532')
    k('s_cselect_b32 s64, 0x76410, s64')
    k('v_lshrrev_b32 v7, v7, s64')
    k('v_and_b32 v7, 15, v7')
    k('v_mul_u32_u24 v6, 10, v6')
    k('v_add_u32 v6, v6, v7')
    k('v_lshrrev_b32 v7, 3, v6')
    k('v_mul_u32_u24 v7, 5120, v7')
    k('v_bfe_u32 v5, v6, 1, 2')
    k('v_lshl_add_u32 v7, v5, 8, v7')
    k('v_and_b32 v5, 1, v6')
    k('v_lshl_add_u32 v7, v5, 3, v7')
    k(f'v_lshl_add_u32 v7, v{VJ}, 4, v7')
    k('s_mul_i32 s64, s47, 204800')
    k(f's_add_u32 s64, s64, {WS_WOF}')
    for t in range(4):
        k(f'buffer_store_dwordx2 {vr(RPV + 2*t, 2)}, v7, s[{SWS}:{SWS+3}], s64 offen offset:{1024*t}')
    k('s_add_u32 s64, s64, 4096')
    k(f'buffer_store_dwordx2 {vr(RPV + 8, 2)}, v7, s[{SWS}:{SWS+3}], s64 offen')
    k('L12_norp2:', tag='keep')
    k.pop()
    stamp(k, 'T30')
    for T in range(30, 60):
        k.extend(tile_seq(T))
    stamp(k, 'T60')
    for T in range(60, 88):
        k.extend(tile_seq(T))
    stamp(k, 'T88')
    k(f'buffer_load_dword v5, v{ZERO}, s[{SWS}:{SWS+3}], s79 offen sc1')
    for T in range(88, 92):
        k.extend(tile_seq(T))
    k('s_mov_b32 s75, 0')
    k('s_waitcnt vmcnt(0)')
    k('L12_poll2:', tag='keep')
    k('v_readfirstlane_b32 s64, v5')
    k('s_cmp_ge_u32 s64, 32')
    k('s_cbranch_scc1 L12_poll2_ok', tag='keep')
    k('s_sleep 4')
    k(f'buffer_load_dword v5, v{ZERO}, s[{SWS}:{SWS+3}], s79 offen sc1')
    k('s_waitcnt vmcnt(0)')
    k('s_add_u32 s75, s75, 1')
    k('s_cmp_lt_u32 s75, 0x100000')
    k('s_cbranch_scc1 L12_poll2', tag='keep')
    k('L12_poll2_ok:', tag='keep')
    k.push()
    k(f's_cmp_eq_u32 s{TY}, 0')
    k('s_cbranch_scc1 L12_nopx', tag='keep')
    k(f's_lshl_b32 s64, s{RB}, 3')
    k(f's_add_u32 s64, s64, s{CG}')
    k('s_mul_i32 s64, s64, 20480')
    k('s_add_u32 s64, s64, s70')
    k(f's_add_u32 s64, s64, {WS_PX}')
    k(f'v_lshlrev_b32 v5, 4, v{LANE}')
    k(f's_add_u32 m0, s70, {L_PH}')
    for i in range(4):
        k(f'buffer_load_dwordx4 v5, s[{SWS}:{SWS+3}], s64 offen offset:{1024*i} sc1 lds')
    k('s_add_u32 s64, s64, 4096')
    k(f's_add_u32 m0, s70, {L_PH + 4096}')
    k(f'buffer_load_dwordx4 v5, s[{SWS}:{SWS+3}], s64 offen sc1 lds')
    k('L12_nopx:', tag='keep')
    k.pop()
    for half in range(2):
        k(f'v_add_u32 v5, {256*half}, v0')
        k('v_cmp_le_u32 vcc, 210, v5')
        k(f'v_cndmask_b32 v6, 0, 1, vcc')
        k('v_mul_u32_u24 v7, 210, v6')
        k('v_sub_u32 v7, v5, v7')
        k(f'v_mul_u32_u24 v8, {16*3360}, v6')
        k(f'v_lshl_add_u32 v{14+half}, v7, 4, v8')
        k('v_mul_u32_u24 v8, 1680, v6')
        k(f'v_lshl_add_u32 v{16+half}, v7, 3, v8')
        k(f'v_add_u32 v{16+half}, {L_KVT}, v{16+half}')
        if half == 1:
            k('v_mov_b32 v8, 0x80000000')
            k('v_cmp_le_u32 vcc, 420, v5')
            k(f'v_cndmask_b32 v15, v15, v8, vcc')
            k(f'v_mov_b32 v8, {L_KVT + 3360}')
            k(f'v_cndmask_b32 v17, v17, v8, vcc')
    k(f's_lshl_b32 s80, s{CG}, 1')
    k(f's_add_u32 s80, s80, s{TY}')
    k(f's_mul_i32 s76, s80, {2*16*3360}')
    k(f's_add_u32 s76, s76, {WS_KVP}')
    k(f'v_and_b32 v8, 31, v{LANE}')
    k(f's_lshl_b32 s64, s{RB}, 7')
    k(f's_and_b32 s68, s{WV}, 1')
    k(f's_lshr_b32 s67, s{WV}, 1')
    k('s_lshl_b32 s65, s68, 6')
    k('s_add_u32 s64, s64, s65')
    k('v_add_u32 v20, s64, v8')
    k('v_lshlrev_b32 v6, 2, v20')
    k(f'v_add_u32 v6, {WS_G}, v6')
    k(f'buffer_load_dword v18, v6, s[{SWS}:{SWS+3}], 0 offen sc1')
    k(f'buffer_load_dword v19, v6, s[{SWS}:{SWS+3}], 0 offen offset:128 sc1')
    RA, RBUF = 120, 128

    def kvload(batch):
        out = []
        for p in range(4):
            for half in range(2):
                out.append(f'buffer_load_dwordx4 {vr(RBUF + 32*(batch%2) + 8*p + 4*half, 4)}, v{14+half}, s[{SWS}:{SWS+3}], s76 offen sc1')
            out.append('s_add_u32 s76, s76, 3360')
        return out

    def kvadd(batch):
        out = []
        for p in range(4):
            for q2 in range(4):
                src = vr(RBUF + 32 * (batch % 2) + 8 * p + 2 * q2, 2)
                if batch == 0 and p == 0:
                    continue
                a = vr(RA + 2 * q2, 2)
                if batch == 0 and p == 1:
                    out.append(f'v_pk_add_f32 {a}, {vr(RBUF + 2*q2, 2)}, {src}')
                else:
                    out.append(f'v_pk_add_f32 {a}, {a}, {src}')
        return out
    extra = {92: kvload(0), 94: kvload(1), 102: kvadd(0), 103: kvload(2), 106: kvadd(1), 107: kvload(3), 116: kvadd(2), 120: kvadd(3),
             121: [f'v_cvt_pk_bf16_f32 v{RA}, v{RA}, v{RA+1}', f'v_cvt_pk_bf16_f32 v{RA+1}, v{RA+2}, v{RA+3}',
                   f'v_cvt_pk_bf16_f32 v{RA+4}, v{RA+4}, v{RA+5}', f'v_cvt_pk_bf16_f32 v{RA+5}, v{RA+6}, v{RA+7}',
                   f'ds_write_b64 v16, {vr(RA,2)}', f'ds_write_b64 v17, {vr(RA+4,2)}']}
    stamp(k, 'T92b')
    for T in range(92, 128):
        seq = tile_seq(T)
        if T in extra:
            seq = interleave(seq, extra[T])
        k.extend(seq)
    k.extend(pv(127))
    k('v_cmp_gt_u32 vcc, 20, v8')
    k(f'v_cndmask_b32 v7, v{ZERO}, v8, vcc')
    k('v_and_b32 v2, 27, v8')
    k('v_cmp_eq_u32 vcc, 24, v2')
    k('v_cndmask_b32 v7, v7, 20, vcc')
    k('v_mul_u32_u24 v7, 80, v7')
    k('s_mul_i32 s64, s67, 1680')
    k(f's_add_u32 s64, s64, {L_KVT}')
    k('v_add_u32 v7, s64, v7')
    k(f'v_lshl_add_u32 v22, v{HH}, 4, v7')
    k(f'v_lshl_add_u32 v23, v{HH}, 3, v7')
    k('v_mul_u32_u24 v7, 80, v8')
    k('s_mul_i32 s64, s67, 10240')
    k('s_mul_i32 s65, s68, 5120')
    k('s_add_u32 s64, s64, s65')
    k(f's_add_u32 s64, s64, {L_PH}')
    k('v_add_u32 v7, s64, v7')
    k(f'v_lshl_add_u32 v24, v{HH}, 4, v7')
    k(f'v_lshl_add_u32 v25, v{HH}, 3, v7')
    k.extend(owrite(7))
    k('s_waitcnt vmcnt(0) lgkmcnt(0)')
    k('s_barrier')
    stamp(k, 'p2main')

    KVF, PF, NA, OP = 40, 52, 72, 104
    k(f'ds_read_b128 {vr(KVF,4)}, v22')
    k(f'ds_read_b128 {vr(KVF+4,4)}, v22 offset:32')
    k(f'ds_read_b64 {vr(KVF+8,2)}, v23 offset:64')
    for e in range(2):
        k(f'ds_read_b128 {vr(PF + 10*e, 4)}, v24 offset:{2560*e}')
        k(f'ds_read_b128 {vr(PF + 10*e + 4, 4)}, v24 offset:{2560*e + 32}')
        k(f'ds_read_b64 {vr(PF + 10*e + 8, 2)}, v25 offset:{2560*e + 64}')
    k(f's_mul_i32 s64, s{WV}, {8*OPART}')
    k(f's_add_u32 s64, s64, {L_OP}')
    k(f'v_lshlrev_b32 v6, 4, v{LANE}')
    k('v_add_u32 v6, s64, v6')
    k(f'v_lshlrev_b32 v7, 2, v{LANE}')
    k('v_add_u32 v7, s64, v7')
    for e in range(2):
        for w2 in range(4):
            B = OP + 56 * e + 14 * w2
            off = (4 * e + w2) * OPART
            for i in range(3):
                k(f'ds_read_b128 {vr(B + 4*i, 4)}, v6 offset:{off + 1024*i}')
            k(f'ds_read_b32 v{B+12}, v7 offset:{off + 3072}')
        if e == 0:
            for e2 in range(2):
                d = vr(NA + 16 * e2, 16)
                k(f'v_mfma_f32_32x32x16_bf16 {d}, {vr(KVF,4)}, {vr(PF + 10*e2, 4)}, 0')
            for e2 in range(2):
                d = vr(NA + 16 * e2, 16)
                k(f'v_mfma_f32_32x32x16_bf16 {d}, {vr(KVF+4,4)}, {vr(PF + 10*e2 + 4, 4)}, {d}')
    for e2 in range(2):
        d = vr(NA + 16 * e2, 16)
        k(f'v_mfma_f32_32x32x8_bf16 {d}, {vr(KVF+8,2)}, {vr(PF + 10*e2 + 8, 2)}, {d}')
    k('v_lshrrev_b32 v6, 4, v20')
    k('v_mul_u32_u24 v6, 40960, v6')
    k('v_and_b32 v7, 15, v20')
    k('v_lshl_add_u32 v6, v7, 4, v6')
    k('v_mov_b32 v7, 0x80000000')
    k(f'v_cmp_eq_u32 vcc, 0, v{HH}')
    k('v_cndmask_b32 v7, v7, v6, vcc')
    k(f'v_mul_u32_u24 v8, 768, v{HH}')
    k('v_add_u32 v6, v6, v8')
    k('s_lshl_b32 s64, s80, 1')
    k('s_add_u32 s64, s64, s67')
    k('s_mul_i32 s64, s64, 1280')
    k(f's_add_u32 s81, s64, {WS_OF}')
    k(f's_add_u32 s82, s81, {2*40960}')
    for e in range(2):
        B = OP + 56 * e
        for w2 in range(1, 4):
            for i in range(0, 12, 2):
                k(f'v_pk_add_f32 {vr(B+i,2)}, {vr(B+i,2)}, {vr(B+14*w2+i,2)}')
            k(f'v_add_f32 v{B+12}, v{B+12}, v{B+14*w2+12}')
        N = NA + 16 * e
        k(f'v_rcp_f32 v2, v{B+12}')
        k(f'v_add_f32 v{N+12}, {hx(f2u(1e-6))}, v{N+12}')
        k(f'v_rcp_f32 v4, v{N+12}')
        k(f'v_sub_f32 v3, 1.0, v{18+e}')
        k(f'v_mul_f32 v2, v2, v3')
        k(f'v_mul_f32 v4, v4, v{18+e}')
        for i in range(0, 12, 2):
            k(f'v_pk_mul_f32 {vr(B+i,2)}, {vr(B+i,2)}, {vr(2,2)} op_sel_hi:[1,0]')
            k(f'v_pk_mul_f32 {vr(N+i,2)}, {vr(N+i,2)}, {vr(4,2)} op_sel_hi:[1,0]')
        for i in range(4):
            k(f'v_cvt_pk_bf16_f32 v{B+i}, v{B+2*i}, v{B+2*i+1}')
            k(f'v_cvt_pk_bf16_f32 v{N+i}, v{N+2*i}, v{N+2*i+1}')
        k(f'v_cvt_pk_bf16_f32 v{N+4}, v{N+8}, v{N+9}')
        k(f'v_cvt_pk_bf16_f32 v{N+5}, v{N+10}, v{N+11}')
        k(f'v_cvt_pk_bf16_f32 v{N+6}, v{B+8}, v{B+9}')
        k(f'v_cvt_pk_bf16_f32 v{N+7}, v{B+10}, v{B+11}')
        so = 81 + e
        k(f'buffer_store_dwordx4 {vr(N,4)}, v6, s[{SWS}:{SWS+3}], s{so} offen')
        k(f'buffer_store_dwordx4 {vr(B,4)}, v6, s[{SWS}:{SWS+3}], s{so} offen offset:256')
        k(f'buffer_store_dwordx4 {vr(N+4,4)}, v7, s[{SWS}:{SWS+3}], s{so} offen offset:512')
    stamp(k, 'end')
    stamp_dump(k, SWS, WV, 0)
    k('L12_end:', tag='nopad')
    k('s_endpgm')
    k('L12_codeend:', tag='nopad')
    return k.text()


def gen_k3():
    k = Asm()
    SO, SOUT = 4, 12
    WV = 38
    LANE, VG, VJ = 1, 37, 38
    ACC = 40
    AFV = 120
    k('k3_kernel:')
    k('s_cmp_ge_u32 s2, 256')
    k('s_cbranch_scc1 L3_end')
    k('s_load_dwordx2 s[44:45], s[0:1], 80')
    k('s_load_dwordx2 s[46:47], s[0:1], 96')
    k('s_and_b32 s62, s2, 7')
    k('s_lshr_b32 s63, s2, 3')
    code_prefetch(k, 'k3', 'L3_codeend', 2, 4, 60)
    k(f'v_and_b32 v{LANE}, 63, v0')
    k(f'v_lshrrev_b32 v5, 6, v0')
    k(f'v_readfirstlane_b32 s{WV}, v5')
    k('s_and_b32 s64, s62, 3')
    k('s_lshl_b32 s64, s64, 3')
    k('s_and_b32 s65, s63, 7')
    k('s_add_u32 s36, s64, s65')
    k('s_lshr_b32 s64, s62, 2')
    k('s_lshl_b32 s64, s64, 2')
    k('s_lshr_b32 s66, s63, 3')
    k('s_add_u32 s37, s64, s66')
    k('s_mul_i32 s64, s65, 5')
    k('s_lshr_b32 s64, s64, 2')
    k('s_mul_i32 s66, s66, 5')
    k('s_lshr_b32 s66, s66, 1')
    k('s_add_u32 s64, s64, s66')
    k('s_sub_u32 s65, s64, 10')
    k('s_cmp_ge_u32 s64, 10')
    k('s_cselect_b32 s48, s65, s64')
    k(f'v_lshrrev_b32 v{VG}, 4, v{LANE}')
    k(f'v_and_b32 v{VJ}, 15, v{LANE}')
    k(f'v_lshlrev_b32 v10, 4, v{LANE}')
    k(f's_mul_i32 s70, s{WV}, 10')
    k('s_mul_i32 s71, s37, 204800')
    k(f's_add_u32 s71, s71, {WS_WOF}')
    k(f's_mul_i32 s72, s36, {4*40960}')
    k(f's_add_u32 s72, s72, {WS_OF}')
    k('s_waitcnt lgkmcnt(0)')
    if DEBUG:
        k('s_memrealtime s[82:83]')
        k('s_waitcnt lgkmcnt(0)')
        k('s_mov_b32 s83, s82')
    stamp(k, 'start')
    srd(k, SO, 46, 47, WS_SIZE)
    srd(k, SOUT, 44, 45, 2048 * 1280)

    def af(s, t):
        return vr(AFV + 20 * s + 4 * t, 4) if s < 6 else ar(160 + 20 * (s - 6) + 4 * t, 4)
    for s in range(10):
        if s:
            k('s_add_u32 s48, s48, 1')
            k('s_cmp_ge_u32 s48, 10')
            k('s_cselect_b32 s48, 0, s48')
        k('s_add_u32 s64, s48, s70')
        k('s_mul_i32 s65, s64, 5120')
        k('s_add_u32 s65, s65, s71')
        k('s_add_u32 s67, s65, 4096')
        k('s_lshl_b32 s66, s64, 10')
        k('s_add_u32 s66, s66, s72')
        for rt in range(4):
            if rt:
                k('s_add_u32 s66, s66, 40960')
            k(f'buffer_load_dwordx4 {ar((rt*10 + s)*4, 4)}, v10, s[{SO}:{SO+3}], s66 offen')
        for t in range(4):
            k(f'buffer_load_dwordx4 {af(s,t)}, v10, s[{SO}:{SO+3}], s65 offen offset:{1024*t}')
        k(f'buffer_load_dwordx4 {af(s,4)}, v10, s[{SO}:{SO+3}], s67 offen')
        if s >= 6:
            s2 = s - 6
            for t in range(5):
                for rt in range(4):
                    d = vr(ACC + 20 * rt + 4 * t, 4)
                    k(f'v_mfma_f32_16x16x32_bf16 {d}, {af(s2,t)}, {ar((rt*10 + s2)*4, 4)}, {d if s2 else 0}')
    stamp(k, 'issued')
    stamp(k, 'first')
    for s in range(4, 10):
        for t in range(5):
            for rt in range(4):
                d = vr(ACC + 20 * rt + 4 * t, 4)
                k(f'v_mfma_f32_16x16x32_bf16 {d}, {af(s,t)}, {ar((rt*10 + s)*4, 4)}, {d}')
    stamp(k, 'main')
    k(f's_mul_i32 s70, s{WV}, 20480')
    k('v_add_u32 v6, s70, v10')
    for rt in range(4):
        for t in range(5):
            k(f'ds_write_b128 v6, {vr(ACC + 20*rt + 4*t, 4)} offset:{(rt*5+t)*1024}')
    k('s_waitcnt lgkmcnt(0)')
    k('s_barrier')
    k(f's_mul_i32 s64, s{WV}, 5120')
    k('v_add_u32 v6, s64, v10')
    k('v_add_u32 v7, 40960, v6')
    R = 40
    for w2 in range(4):
        for t in range(5):
            k(f'ds_read_b128 {vr(R + 20*w2 + 4*t, 4)}, v{6 if w2 < 2 else 7} offset:{(w2%2)*20480 + t*1024}')
    k('s_lshl_b32 s64, s36, 6')
    k(f's_lshl_b32 s65, s{WV}, 4')
    k('s_add_u32 s64, s64, s65')
    k(f'v_add_u32 v5, s64, v{VJ}')
    k('v_mul_u32_u24 v5, 1280, v5')
    k(f'v_mul_u32_u24 v8, 40, v{VG}')
    k('v_add_u32 v5, v5, v8')
    k('s_mul_i32 s64, s37, 160')
    for w2 in range(1, 4):
        for i in range(0, 20, 2):
            k(f'v_pk_add_f32 {vr(R+i,2)}, {vr(R+i,2)}, {vr(R+20*w2+i,2)}')
    for i in range(10):
        k(f'v_cvt_pk_bf16_f32 v{R+i}, v{R+2*i}, v{R+2*i+1}')
    k(f'buffer_store_dwordx4 {vr(R,4)}, v5, s[{SOUT}:{SOUT+3}], s64 offen')
    k(f'buffer_store_dwordx4 {vr(R+4,4)}, v5, s[{SOUT}:{SOUT+3}], s64 offen offset:16')
    k(f'buffer_store_dwordx2 {vr(R+8,2)}, v5, s[{SOUT}:{SOUT+3}], s64 offen offset:32')
    stamp(k, 'end')
    stamp_dump(k, SO, WV, 1)
    k('L3_end:', tag='nopad')
    k('s_endpgm')
    k('L3_codeend:', tag='nopad')
    return k.text()


HEADER = open('cdna_kernels/' + NAME + '.s.ref').read().split('; Override launch')[0]


def kd(name, vgpr, accoff):
    return f""".amdhsa_kernel {name}
  .amdhsa_next_free_vgpr {vgpr}
  .amdhsa_next_free_sgpr 102
  .amdhsa_accum_offset {accoff}
  .amdhsa_group_segment_fixed_size 0
  .amdhsa_kernarg_size 104
  .amdhsa_user_sgpr_count 2
  .amdhsa_user_sgpr_kernarg_segment_ptr 1
  .amdhsa_system_sgpr_workgroup_id_x 1
.end_amdhsa_kernel
"""


def build():
    s = HEADER
    s += f'; @launch kernel=k12_kernel grid=(256,1,1) block=(256,1,1) lds={LDS12}\n'
    s += f'; @launch kernel=k3_kernel grid=(256,1,1) block=(256,1,1) lds=81920\n'
    s += '.amdgcn_target "amdgcn-amd-amdhsa--gfx950"\n.text\n'
    for nm, body in (('k12_kernel', gen_k12()), ('k3_kernel', gen_k3())):
        s += f'.globl {nm}\n.p2align 8\n.type {nm},@function\n' + body
    s += '.section .rodata,"a"\n.p2align 6\n'
    s += kd('k12_kernel', 512, 256)
    s += '.p2align 6\n'
    s += kd('k3_kernel', 512, 256)
    return s


if __name__ == '__main__':
    out = sys.argv[1] if len(sys.argv) > 1 else 'cdna_kernels/' + NAME + '.s'
    open(out, 'w').write(build())
    print('wrote', out)
```
